```python
import torch

def _softmax(x, axis=-1):
    return torch.softmax(x, dim=axis)
def _gelu(x):
    return torch.nn.functional.gelu(x, approximate="tanh")
def _silu(x):
    return torch.nn.functional.silu(x)
def _sigmoid(x):
    return torch.sigmoid(x)
def _layernorm(x, axis=-1, eps=1e-5):
    m = x.mean(dim=axis, keepdim=True)
    v = x.var(dim=axis, keepdim=True, unbiased=False)
    return (x - m) / torch.sqrt(v + eps)
def _scatter_add(tgt, idx, src, axis=0):
    return tgt.clone().index_add_(axis, idx, src)
def _segment_sum(src, seg, n):
    out = torch.zeros((n,) + src.shape[1:], dtype=src.dtype)
    return out.index_add_(0, seg, src)
def _pad(x, pw):
    flat = tuple(v for pair in reversed(pw) for v in pair)
    return torch.nn.functional.pad(x, flat)

kernel_name = 'standalone__modern_conv_block_convnext__vision'

def setup_inputs():

    _w = (lambda a: (lambda t: t.to(torch.bfloat16) if t.is_floating_point() else t)(torch.as_tensor(a)))
    H = W = 512
    C = 96
    K = 1
    return {
        "x": _w((lambda *s: torch.randn(*s, dtype=torch.bfloat16) * 0.05)(1, H, W, C)),
        "dw": _w((lambda *s: torch.randn(*s, dtype=torch.bfloat16) * 0.1)(K, K, C)),
        "w1": _w((lambda *s: torch.randn(*s, dtype=torch.bfloat16) * 0.1)(C, 4 * C)),
        "b1": _w((lambda *s: torch.randn(*s, dtype=torch.bfloat16) * 0.4)(4 * C)),
        "w2": _w((lambda *s: torch.randn(*s, dtype=torch.bfloat16) * 0.05)(4 * C, C)),
        "b2": _w((lambda *s: torch.randn(*s, dtype=torch.bfloat16) * 0.4)(C)),
        "gamma": _w((lambda *s: torch.randn(*s, dtype=torch.bfloat16) * 0.05)(C)),
    }

def reference(x, dw, w1, b1, w2, b2, gamma):
    B, H, W, C = x.shape
    K = dw.shape[0]
    pad = K // 2
    xp = _pad(x, ((0,0),(pad,pad),(pad,pad),(0,0)))
    out = torch.zeros_like(x)
    for i in range(K):
        for j in range(K):
            out = out + xp[:, i:i+H, j:j+W, :] * dw[i, j][None, None, None, :]
    h = _layernorm(out, axis=-1)
    h = torch.einsum('bhwc,ce->bhwe', h, w1) + b1
    h = _gelu(h)
    h = torch.einsum('bhwe,ec->bhwc', h, w2) + b2
    return x + gamma[None, None, None, :] * h
```

```python
import re
def regs_of(tok):
    tok=tok.strip()
    neg=tok.startswith('-')
    if neg: tok=tok[1:]
    m=re.fullmatch(r'v\[(\d+):(\d+)\]',tok)
    if m: return [('v',i) for i in range(int(m.group(1)),int(m.group(2))+1)]
    m=re.fullmatch(r'v(\d+)',tok)
    if m: return [('v',int(m.group(1)))]
    m=re.fullmatch(r's\[(\d+):(\d+)\]',tok)
    if m: return [('s',i) for i in range(int(m.group(1)),int(m.group(2))+1)]
    m=re.fullmatch(r's(\d+)',tok)
    if m: return [('s',int(m.group(1)))]
    if tok=='vcc': return [('s','vcc')]
    return []
TRANS=('v_exp_f32','v_rcp_f32','v_rsq_f32','v_log_f32','v_sqrt_f32')
class I:
    def __init__(s,text):
        s.text=text.strip()
        t=s.text.split(';')[0].strip()
        parts=t.split(None,1)
        s.op=parts[0] if parts else ''
        ops=[]
        if len(parts)>1:
            raw=[x.strip() for x in parts[1].split(',')]
            for k,x in enumerate(raw):
                ops.append(x.split()[0] if x else x)
        s.ops=ops
        op=s.op
        s.defs=[];s.uses=[];s.kind='other'
        R=[regs_of(o) for o in ops]
        if op.startswith('v_mfma'):
            s.kind='mfma'; s.defs=R[0]; s.a=R[1]; s.b=R[2]; s.c=R[3]; s.uses=R[1]+R[2]+R[3]
        elif op.startswith('ds_read'):
            s.kind='ldsr'; s.defs=R[0]; s.uses=R[1]
        elif op.startswith('ds_write'):
            s.kind='ldsw'; s.uses=sum(R,[])
        elif op.startswith('buffer_load') :
            if ' lds' in t:
                s.kind='dma'; s.uses=sum(R,[])
            else:
                s.kind='vload'; s.defs=R[0]; s.uses=sum(R[1:],[])
        elif op.startswith('buffer_store') :
            s.kind='vstore'; s.uses=sum(R,[]); s.data=R[0]
        elif op.startswith('v_permlane32_swap'):
            s.kind='valu'; s.defs=R[0]+R[1]; s.uses=R[0]+R[1]
        elif op.startswith('v_cmp'):
            s.kind='valu'; s.defs=R[0]; s.uses=sum(R[1:],[])
        elif op.startswith('v_readfirstlane'):
            s.kind='valu'; s.defs=R[0]; s.uses=R[1]
        elif op.startswith('v_'):
            s.kind='valu'; s.defs=R[0]; s.uses=sum(R[1:],[])
            if op.startswith('v_fmac'): s.uses+=R[0]
            if op.startswith('v_cndmask') : s.uses+=[('s','vcc')]
        elif op.startswith('s_waitcnt'): s.kind='wait'
        elif op.startswith('s_nop'): s.kind='nop'
        elif op.endswith(':'): s.kind='label'
        elif op.startswith('s_'):
            s.kind='salu'
            if op.startswith(('s_cmp','s_cbranch','s_branch','s_barrier','s_setprio','s_endpgm','s_bitcmp')): s.uses=sum(R,[])
            else:
                s.defs=R[0] if R else []; s.uses=sum(R[1:],[])
        s.trans = op in TRANS
    def states(s):
        if s.kind=='label' or s.op=='' or s.op.startswith('.'): return 0
        if s.kind=='nop': return int(s.ops[0])+1
        return 1
def parse_wait(text):
    vm=re.search(r'vmcnt\((\d+)\)',text); lg=re.search(r'lgkmcnt\((\d+)\)',text)
    return (int(vm.group(1)) if vm else None, int(lg.group(1)) if lg else None)

def insert_waits(prog, lds_state=None, vm_state=None):
    out=[]; lds=list(lds_state or []); vm=list(vm_state or [])
    for ins in prog:
        if ins.kind=='wait':
            v,l=parse_wait(ins.text)
            if v is not None: vm=vm[len(vm)-v:] if v<len(vm) and v>0 else ([] if v==0 else vm)
            if l is not None: lds=lds[len(lds)-l:] if l<len(lds) and l>0 else ([] if l==0 else lds)
            out.append(ins); continue
        touched=set(ins.defs)|set(ins.uses)
        needl=None; needv=None
        for k,d in enumerate(lds):
            if d and touched&d: needl=len(lds)-1-k
        for k,d in enumerate(vm):
            if d and touched&d: needv=len(vm)-1-k
        if ins.kind in('ldsr','ldsw') and len(lds)>=15:
            n=len(lds)-14
            needl=min(needl,14) if needl is not None else 14
        if needl is not None or needv is not None:
            w='s_waitcnt'
            if needv is not None: w+=f' vmcnt({needv})'; vm=vm[len(vm)-needv:] if needv>0 else []
            if needl is not None: w+=f' lgkmcnt({needl})'; lds=lds[len(lds)-needl:] if needl>0 else []
            out.append(I(w))
        out.append(ins)
        if ins.kind=='ldsr': lds.append(set(ins.defs))
        elif ins.kind=='ldsw': lds.append(set())
        elif ins.kind=='vload': vm.append(set(ins.defs))
        elif ins.kind in('vstore','dma'): vm.append(set())
    return out,lds,vm

def insert_nops(prog, hist=None):
    out=list(hist or []); h0=len(out)
    for ins in prog:
        if ins.states()==0:
            out.append(ins); continue
        need=0
        dist=0
        D=set(ins.defs); U=set(ins.uses)
        for p in reversed(out):
            if dist>=20: break
            req=0
            PD=set(p.defs)
            if p.kind=='mfma':
                if ins.kind=='mfma':
                    if PD&set(ins.a+ins.b): req=12
                    elif PD&set(ins.c):
                        req = 0 if (p.defs==ins.c) else 10
                    elif PD&D: req=10
                else:
                    if PD&(D|U): req=12
                    if ins.kind=='valu' and set(p.c)&D: req=max(req,7)
                    if ins.kind in('ldsr','vload') and set(p.c)&D: req=max(req,7)
            elif p.kind=='valu':
                if ins.kind=='mfma' and PD&U: req=2
                if p.trans and ins.kind=='valu' and not ins.trans and PD&U: req=max(req,1)
                if p.trans and ins.kind in('ldsw','vstore') and PD&U: req=max(req,1)
                if ins.op.startswith('v_permlane') and PD&U: req=max(req,2)
                if ins.op.startswith('v_readfirstlane') and PD&U: req=max(req,1)
                sd={r for r in PD if r[0]=='s'}
                if sd:
                    if ins.kind=='valu' and sd&U: req=max(req,2)
                    if ins.kind in('vload','vstore','dma') and sd&U: req=max(req,5)
                    if ins.kind=='salu' and sd&U: req=max(req,4)
            elif p.kind=='vstore':
                if ins.kind in('valu','mfma','ldsr','vload') and set(p.data)&D: req=max(req,2)
            elif p.kind=='salu':
                if p.ops and p.ops[0]=='m0' and ins.kind=='dma': req=max(req,1)
            if req>dist: need=max(need,req-dist)
            dist+=p.states()
        while need>0:
            n=min(need,16); out.append(I(f's_nop {n-1}')); need-=n
        out.append(ins)
    return out[h0:]
```

```python
import sys, struct, math, argparse
from asmlib import *
def f2u(x): return struct.unpack('<I',struct.pack('<f',x))[0]
def hx(x): return f"0x{f2u(x):08x}"
k1=-2.0*math.sqrt(2.0/math.pi)*math.log2(math.e); k2=k1*0.044715
SC=(-k2)**(1.0/3.0); AC=k1/SC
vT=0; vW1a=1; vW1b=2; vW2a=3; vW2b=4; vP16=5; vFr=6; vG=7
vRHO=8; vT1=9; vT2=10; vT3=11
IR=12; XB=20; H=36; XC=60; XN=84; ACC=108; P=156; Z=204; G=228; AF=232
sX=4; sO=8; sW1=12; sW2=16; sS=20
sWAVE=24; sCNT=26; sOFFN=27; sOFFO=28; sOFFC=29; sA=30; sM96=31; sVS=32; sEPS=33; sSC=34; sISC=35
W2B=73728; PAR=147456; PB1=0; PG=1536; PGB=1920; PDW=2304; FR=PAR+2560; LDSSZ=FR+6144
def vr(b,n): return f"v[{b}:{b+n-1}]"
def MF(d,a,b,c=None):
    cs = vr(d,16) if c is None else (c if isinstance(c,str) else vr(c,16))
    return I(f"v_mfma_f32_32x32x16_bf16 {vr(d,16)}, {vr(a,4)}, {vr(b,4)}, {cs}")
def Preg(jj): return P+16*((jj//2)%3)+8*(jj%2)
def Pbuf(t): return P+16*(t%3)
def Zreg(jj): return Z+8*(jj%3)
def frag_w1(slot,t,ks):
    u=t*6+ks; base=vW1a if u<36 else vW1b; off=(u%36)*1024
    d=AF+4*slot
    return [I(f"ds_read_b64_tr_b16 {vr(d,2)}, v{base} offset:{off}"), I(f"ds_read_b64_tr_b16 {vr(d+2,2)}, v{base} offset:{off+256}")]
def frag_w2(slot,jj,rt):
    u=jj*3+rt; base=vW2a if u<36 else vW2b; off=(u%36)*1024
    d=AF+4*slot
    return [I(f"ds_read_b64_tr_b16 {vr(d,2)}, v{base} offset:{off}"), I(f"ds_read_b64_tr_b16 {vr(d+2,2)}, v{base} offset:{off+512}")]
def bias_load(t):
    return [I(f"ds_read_b128 {vr(Pbuf(t)+4*m,4)}, v{vP16} offset:{PB1+128*t+32*m}") for m in range(4)]
NH=24
def step_parts(j, role):
    S=[];X=[];F=[]
    Sa=[];Sb=[];Sc=[];Xe=[];Xr=[];Xc=[]
    if 0<=j+1<NH:
        p=Preg(j+1); z=Zreg(j+1)
        Sa+= [I(f"v_fma_f32 v{z+k}, -v{p+k}, v{p+k}, s{sA}") for k in range(8)]
        Sa+= [I(f"v_mul_f32 v{z+k}, v{z+k}, v{p+k}") for k in range(8)]
        Xe+= [I(f"v_exp_f32 v{z+k}, v{z+k}") for k in range(8)]
    if 0<=j<NH:
        z=Zreg(j)
        Sb+= [I(f"v_add_f32 v{z+k}, 1.0, v{z+k}") for k in range(8)]
        Xr+= [I(f"v_rcp_f32 v{z+k}, v{z+k}") for k in range(8)]
    if 0<=j-1<NH:
        z=Zreg(j-1); p=Preg(j-1)
        Sc+= [I(f"v_mul_f32 v{z+k}, v{z+k}, v{p+k}") for k in range(8)]
        Xc+= [I(f"v_cvt_pk_bf16_f32 v{G+k}, v{z+2*k}, v{z+2*k+1}") for k in range(4)]
    S=Sc+Sb+Sa
    X=Xc+Xr+Xe
    def m1(jj):
        t=(jj+3)//2; part=(jj+3)%2
        if not(0<=t<12) or jj+3<0: return None
        return (t,part)
    def m2(jj):
        q=jj-1 if role==0 else jj-2
        return q if 0<=q<NH else None
    cur1=m1(j); nxt1=m1(j+1); cur2=m2(j); nxt2=m2(j+1)
    for k in range(3):
        if cur1:
            t,part=cur1; ks=3*part+k
            F.append(MF(Pbuf(t),AF+4*k,H+4*ks))
        if nxt1:
            t,part=nxt1; F+=frag_w1(k,t,3*part+k)
    for k in range(3):
        if cur2 is not None:
            F.append(MF(ACC+16*k,AF+4*(3+k),G, "0" if cur2==0 else None))
        if nxt2 is not None:
            F+=frag_w2(3+k,nxt2,k)
    if (j+4)%2==0 and 0<=(j+4)//2<12:
        F+=bias_load((j+4)//2)
    return S,X,F
def emit_step(j,role,extraS=[],extraX=[],extraF=[]):
    S,X,F=step_parts(j,role)
    S=list(extraS)+S; X=X+list(extraX); F=F+list(extraF)
    out=[]
    PX=([I("s_setprio 1")]+X+[I("s_setprio 0")]) if X else []
    if role==0: out=S+PX+F
    else: out=S+F+PX
    return out
def epi_res(rt):
    return [MF(XB,IR,XC+8*rt),MF(XB,IR+4,XC+8*rt+4)]
def epi_ld_gb(rt): return [I(f"ds_read_b128 {vr(XB+4*m,4)}, v{vP16} offset:{PGB+128*rt+32*m}") for m in range(4)]
def epi_ld_g(rt,dst): return [I(f"ds_read_b128 {vr(dst+4*m,4)}, v{vP16} offset:{PG+128*rt+32*m}") for m in range(4)]
def epi_fma(rt,g): return [I(f"v_fma_f32 v{ACC+16*rt+r}, v{ACC+16*rt+r}, v{g+r}, v{XB+r}") for r in range(16)]
def epi_cvt(rt): return [I(f"v_cvt_pk_bf16_f32 v{ACC+16*rt+q}, v{ACC+16*rt+2*q}, v{ACC+16*rt+2*q+1}") for q in range(8)]
def epi_st(rt): return [I(f"buffer_store_dwordx4 {vr(ACC+16*rt+4*kl,4)}, v{vG}, s[{sO}:{sO+3}], s{sOFFO} offen offset:{(2*rt+kl)*32}") for kl in range(2)]
def X_(l): return [I("s_setprio 1")]+l+[I("s_setprio 0")]
def boundary(role, epi):
    o=[]
    DM=Z
    GT=H
    o+=[I(f"ds_read_b128 {vr(AF+4*k,4)}, v{vP16} offset:{PDW+32*k}") for k in range(6)]
    if epi: o+=epi_ld_gb(0)
    for k in range(6):
        o.append(MF(DM,AF+4*k,XN+4*k,"0" if k==0 else None))
        o.append(I(f"ds_read_b128 {vr(AF+4*k,4)}, v{vFr} offset:{1024*k}"))
    if epi:
        o+=epi_res(0); o+=epi_ld_g(0,GT)
    o+=[I(f"v_mul_f32 v{DM+r}, s{sM96}, v{DM+r}") for r in range(16)]
    for rt in range(3):
        o.append(MF(P+16*rt,AF+8*rt,XN+8*rt,DM))
    for rt in range(3):
        o.append(MF(P+16*rt,AF+8*rt+4,XN+8*rt+4))
    if epi:
        o+=epi_fma(0,GT)
        o+=epi_ld_gb(1); o+=epi_ld_g(1,GT)
        o+=X_(epi_cvt(0)); o+=epi_st(0)
        o+=epi_res(1)
    for k in range(3): o+=frag_w1(k,0,k)
    ss=[]
    for n in range(48):
        c=P+n; a=G+(n%4)
        if n<4: ss.append(I(f"v_mul_f32 v{a}, v{c}, v{c}"))
        else: ss.append(I(f"v_fma_f32 v{a}, v{c}, v{c}, v{a}"))
    o+=ss
    o+=[I(f"v_add_f32 v{G}, v{G}, v{G+1}"),I(f"v_add_f32 v{G+2}, v{G+2}, v{G+3}"),I(f"v_add_f32 v{G}, v{G}, v{G+2}"),
        I(f"v_mov_b32 v{vT1}, v{G}"),
        I(f"v_permlane32_swap_b32 v{vT1}, v{G}"),
        I(f"v_add_f32 v{G}, v{G}, v{vT1}"),
        I(f"v_fma_f32 v{G}, v{G}, s{sVS}, v{vT3}"),
        I(f"v_rsq_f32 v{vRHO}, v{G}")]
    if epi:
        o+=epi_fma(1,GT)
        o+=epi_ld_gb(2); o+=epi_ld_g(2,Z)
    for rt in range(3):
        o+=[I(f"v_mul_f32 v{P+16*rt+r}, v{vRHO}, v{P+16*rt+r}") for r in range(16)]
        if rt==0 and epi:
            o+=epi_res(2)
        o+=X_([I(f"v_cvt_pk_bf16_f32 v{H+8*rt+q}, v{P+16*rt+2*q}, v{P+16*rt+2*q+1}") for q in range(8)])
        if rt==0: o+=bias_load(0)
    mv=[I(f"v_mov_b32 v{XC+r}, v{XN+r}") for r in range(24)]
    for k in range(3):
        o.append(MF(Pbuf(0),AF+4*k,H+4*k)); o+=frag_w1(k,0,3+k)
    if epi:
        o+=X_(epi_cvt(1)); o+=epi_st(1)
    o+=mv
    o.append(I("PREFETCH"))
    for k in range(3):
        o.append(MF(Pbuf(0),AF+4*k,H+4*(3+k))); o+=frag_w1(k,1,k)
    o+=bias_load(1)
    if epi:
        o+=epi_fma(2,Z); o+=X_(epi_cvt(2)); o+=epi_st(2)
    return o
def final_epi():
    o=[]
    for rt in range(3):
        o+=epi_ld_gb(rt); o+=epi_ld_g(rt,H); o+=epi_res(rt); o+=epi_fma(rt,H); o+=epi_cvt(rt); o+=epi_st(rt)
    return o
def xloads(dst): return [I(f"buffer_load_dwordx4 {vr(dst+4*k,4)}, v{vG}, s[{sX}:{sX+3}], s{sOFFN} offen offset:{32*k}") for k in range(6)]
def steps(role):
    o=[]
    last=24 if role==0 else 25
    for j in range(-1,last+1): o+=emit_step(j,role)
    return o
def finalize(prog, lds=None, vm=None, hist=None):
    p,l,v=insert_waits(prog,lds,vm)
    p=insert_nops(p,hist)
    return p,l,v
def expand_prefetch(prog, tag, do):
    out=[]
    for ins in prog:
        if ins.op=='PREFETCH':
            if do=='always': out+=xloads(XN)
            else:
                out+= [I(f"s_mov_b32 s{sOFFC}, s{sOFFN}"),I(f"s_cmp_eq_u32 s{sCNT}, 1"),I(f"s_cbranch_scc1 L_nopf_{tag}"),I(f"s_add_u32 s{sOFFN}, s{sOFFN}, {2048*6144}")]+xloads(XN)+[I(f"L_nopf_{tag}:")]
        else: out.append(ins)
    return out
def prologue():
    o=[]
    A=lambda t:o.append(I(t))
    A("s_cmp_ge_u32 s2, 256"); A("s_cbranch_scc1 L_end")
    A("s_load_dwordx16 s[36:51], s[0:1], 0")
    A(f"v_lshrrev_b32 v{vT1}, 6, v0")
    A(f"v_mov_b32 v{vT2}, v0")
    A(f"v_and_b32 v{vT}, 63, v0")
    A(f"v_readfirstlane_b32 s{sWAVE}, v{vT1}")
    A(f"s_mov_b32 s{sA}, {hx(AC)}"); A(f"s_mov_b32 s{sM96}, {hx(-1.0/96)}"); A(f"s_mov_b32 s{sVS}, {hx(1.0/(96*SC*SC))}")
    A(f"s_mov_b32 s{sSC}, {hx(SC)}"); A(f"s_mov_b32 s{sISC}, {hx(1.0/SC)}")
    A(f"v_mov_b32 v{vT3}, {hx(1e-5/(SC*SC))}")
    L=vT; t0=P
    A(f"v_lshrrev_b32 v{t0}, 5, v{L}")
    A(f"v_and_b32 v{t0+1}, 31, v{L}")
    A(f"v_mul_u32_u24 v{vG}, 192, v{t0+1}"); A(f"v_lshl_add_u32 v{vG}, v{t0}, 4, v{vG}")
    A(f"v_lshlrev_b32 v{vP16}, 4, v{t0}"); A(f"v_add_u32 v{vP16}, {PAR}, v{vP16}")
    A(f"v_lshlrev_b32 v{vFr}, 4, v{L}"); A(f"v_add_u32 v{vFr}, {FR}, v{vFr}")
    A(f"s_lshl_b32 s{sOFFN}, s2, 3"); A(f"s_add_u32 s{sOFFN}, s{sOFFN}, s{sWAVE}"); A(f"s_mul_i32 s{sOFFN}, s{sOFFN}, 6144")
    A("s_waitcnt lgkmcnt(0)")
    def srd(d,p,n):
        A(f"s_mov_b32 s{d}, s{p}"); A(f"s_and_b32 s{d+1}, s{p+1}, 0xffff"); A(f"s_mov_b32 s{d+2}, {n}"); A(f"s_mov_b32 s{d+3}, 0x20000")
    srd(sX,36,50331648); srd(sO,50,50331648); srd(sW1,40,73728); srd(sW2,44,73728)
    srd(52,38,192); srd(56,42,768); srd(60,46,192); srd(64,48,192)
    q=P+8
    A(f"v_lshlrev_b32 v{q}, 1, v{vT2}")
    A(f"buffer_load_ushort v{q+1}, v{q}, s[56:59], 0 offen")
    A(f"v_lshlrev_b32 v{q+2}, 2, v{L}")
    A(f"buffer_load_dword v{q+3}, v{q+2}, s[64:67], 0 offen")
    A(f"buffer_load_dword v{q+4}, v{q+2}, s[60:63], 0 offen")
    A(f"buffer_load_dword v{q+5}, v{q+2}, s[52:55], 0 offen")
    A(f"s_lshl_b32 s68, s{sWAVE}, 5"); A("s_min_u32 s68, s68, 160")
    A(f"v_lshlrev_b32 v{q+6}, 4, v{t0}")
    A(f"buffer_load_dwordx4 {vr(q+8,4)}, v{q+6}, s[52:55], s68 offen")
    o.extend(xloads(XN))
    d=P+24
    A(f"v_lshrrev_b32 v{d}, 2, v{L}")
    A(f"v_and_b32 v{d+1}, 3, v{L}")
    A(f"v_mul_u32_u24 v{d+2}, 768, v{d}"); A(f"v_lshl_add_u32 v{d+2}, v{d+1}, 4, v{d+2}")
    A(f"v_mul_u32_u24 v{d+3}, 192, v{d}"); A(f"v_lshl_add_u32 v{d+3}, v{d+1}, 4, v{d+3}")
    for n in range(9):
        A(f"s_add_u32 s70, s{sWAVE}, {8*n}")
        A(f"s_mul_i32 s71, s70, 43"); A("s_lshr_b32 s71, s71, 8")
        A("s_mul_i32 s72, s71, 6"); A("s_sub_u32 s72, s70, s72")
        A(f"s_mul_i32 s72, s72, {16*768}"); A("s_lshl_b32 s71, s71, 6"); A("s_add_u32 s71, s71, s72")
        A("s_lshl_b32 m0, s70, 10")
        A(f"buffer_load_dwordx4 v{d+2}, s[{sW1}:{sW1+3}], s71 offen lds")
        A("s_mul_i32 s71, s70, 86"); A("s_lshr_b32 s71, s71, 8")
        A("s_mul_i32 s72, s71, 3"); A("s_sub_u32 s72, s70, s72")
        A("s_mul_i32 s71, s71, 3072"); A("s_lshl_b32 s72, s72, 6"); A("s_add_u32 s71, s71, s72")
        A("s_lshl_b32 s73, s70, 10"); A(f"s_add_u32 m0, s73, {W2B}")
        A(f"buffer_load_dwordx4 v{d+3}, s[{sW2}:{sW2+3}], s71 offen lds")
    e=P+32
    A(f"v_bfe_u32 v{e}, v{L}, 4, 1")
    A(f"v_bfe_u32 v{e+1}, v{L}, 2, 2")
    A(f"v_and_b32 v{e+2}, 3, v{L}")
    A(f"v_lshlrev_b32 v{e+3}, 6, v{e+1}")
    A(f"v_lshl_add_u32 v{e+3}, v{e}, 5, v{e+3}")
    A(f"v_lshl_add_u32 v{vW1a}, v{e+2}, 3, v{e+3}")
    A(f"v_lshl_add_u32 v{vW1a}, v{t0}, 9, v{vW1a}")
    A(f"v_add_u32 v{vW1b}, 36864, v{vW1a}")
    A(f"v_and_b32 v{e+4}, 1, v{L}"); A(f"v_bfe_u32 v{e+5}, v{L}, 1, 1")
    A(f"v_lshl_add_u32 v{e+3}, v{e+4}, 4, v{e+3}"); A(f"v_lshl_add_u32 v{e+3}, v{e+5}, 3, v{e+3}")
    A(f"v_lshl_add_u32 v{vW2a}, v{t0}, 8, v{e+3}")
    A(f"v_add_u32 v{vW2a}, {W2B}, v{vW2a}"); A(f"v_add_u32 v{vW2b}, 36864, v{vW2a}")
    m=Z
    A(f"v_bfe_u32 v{m}, v{L}, 2, 1")
    A(f"v_and_b32 v{m+1}, 1, v{L}")
    A(f"v_mov_b32 v{m+2}, 0xffff"); A(f"v_mov_b32 v{m+3}, 0xffff0000")
    A(f"v_cmp_eq_u32 vcc, 1, v{m+1}"); A(f"v_cndmask_b32 v{m+2}, v{m+2}, v{m+3}, vcc")
    A(f"v_cmp_eq_u32 vcc, v{m}, v{t0}"); A(f"v_cndmask_b32 v{m+2}, 0, v{m+2}, vcc")
    A(f"v_bfe_u32 v{m+3}, v{L}, 4, 1"); A(f"v_bfe_u32 v{m+4}, v{L}, 3, 1"); A(f"v_bfe_u32 v{m+5}, v{L}, 1, 1")
    A(f"v_lshlrev_b32 v{m+3}, 2, v{m+3}"); A(f"v_lshl_add_u32 v{m+3}, v{m+4}, 1, v{m+3}"); A(f"v_add_u32 v{m+3}, v{m+3}, v{m+5}")
    for n in range(8):
        A(f"v_cmp_eq_u32 vcc, {n}, v{m+3}"); A(f"v_cndmask_b32 v{m+8+n}, 0, v{m+2}, vcc")
    for n in range(8): A(f"v_and_b32 v{IR+n}, 0x3f803f80, v{m+8+n}")
    A("s_waitcnt vmcnt(24)")
    A(f"s_cmp_ge_u32 s{sWAVE}, 6"); A("s_cbranch_scc1 L_p67")
    A(f"v_lshlrev_b32 v{q+1}, 16, v{q+1}"); A(f"v_mul_f32 v{q+1}, s{sSC}, v{q+1}")
    A(f"v_lshlrev_b32 v{q}, 2, v{vT2}"); A(f"v_add_u32 v{q}, {PAR+PB1}, v{q}"); A(f"ds_write_b32 v{q}, v{q+1}")
    A(f"s_bitcmp1_b32 s{sWAVE}, 0"); A("s_cbranch_scc0 L_kl0")
    for n in range(4): A(f"v_mov_b32 v{m+8+n}, v{m+12+n}")
    A("L_kl0:")
    for n in range(4): A(f"v_and_b32 v{q+8+n}, v{q+8+n}, v{m+8+n}")
    A(f"s_lshl_b32 s68, s{sWAVE}, 10"); A(f"v_add_u32 v{q}, s68, v{vFr}"); A(f"ds_write_b128 v{q}, {vr(q+8,4)}")
    A("s_branch L_pdone")
    A("L_p67:")
    A(f"v_cmp_gt_u32 vcc, 48, v{L}"); A("s_and_saveexec_b64 s[74:75], vcc")
    A(f"s_cmp_eq_u32 s{sWAVE}, 7"); A("s_cbranch_scc1 L_p7")
    A(f"v_lshlrev_b32 v{q+8}, 16, v{q+3}"); A(f"v_and_b32 v{q+9}, 0xffff0000, v{q+3}")
    A(f"v_lshlrev_b32 v{q+10}, 16, v{q+4}"); A(f"v_and_b32 v{q+11}, 0xffff0000, v{q+4}")
    A(f"v_mul_f32 v{q+10}, v{q+8}, v{q+10}"); A(f"v_mul_f32 v{q+11}, v{q+9}, v{q+11}")
    A(f"v_mul_f32 v{q+8}, s{sISC}, v{q+8}"); A(f"v_mul_f32 v{q+9}, s{sISC}, v{q+9}")
    A(f"v_lshrrev_b32 v{q}, 4, v{L}"); A(f"v_lshlrev_b32 v{q}, 7, v{q}")
    A(f"v_bfe_u32 v{q+1}, v{L}, 3, 1"); A(f"v_lshl_add_u32 v{q}, v{q+1}, 6, v{q}")
    A(f"v_bfe_u32 v{q+1}, v{L}, 1, 1"); A(f"v_lshl_add_u32 v{q}, v{q+1}, 5, v{q}")
    A(f"v_bfe_u32 v{q+1}, v{L}, 2, 1"); A(f"v_lshl_add_u32 v{q}, v{q+1}, 4, v{q}")
    A(f"v_and_b32 v{q+1}, 1, v{L}"); A(f"v_lshl_add_u32 v{q}, v{q+1}, 3, v{q}")
    A(f"v_add_u32 v{q}, {PAR}, v{q}")
    A(f"ds_write_b64 v{q}, {vr(q+8,2)} offset:{PG}"); A(f"ds_write_b64 v{q}, {vr(q+10,2)} offset:{PGB}")
    A("s_branch L_p67e")
    A("L_p7:")
    A(f"v_add_u32 v{q}, {PAR+PDW}, v{q+2}"); A(f"ds_write_b32 v{q}, v{q+5}")
    A("L_p67e:")
    A("s_mov_b64 exec, s[74:75]")
    A("L_pdone:")
    A("s_waitcnt vmcnt(0) lgkmcnt(0)")
    A("s_barrier")
    return o
def build():
    out=[]
    pro=prologue()
    p,l,v=finalize(pro)
    out+=p
    out.append(I(f"s_mov_b32 s{sCNT}, 4"))
    out.append(I(f"s_cmp_ge_u32 s{sWAVE}, 4")); out.append(I("s_cbranch_scc1 L_roleB"))
    for role in (0,1):
        tag="AB"[role]
        if role==1: out.append(I("L_roleB:"))
        first=expand_prefetch(boundary(role,False),tag+"0",'cond')
        st=steps(role)
        p,l,v=finalize(first); out+=p
        out.append(I("s_nop 7")); out.append(I(f"s_branch L_steps{tag}"))
        out.append(I(".p2align 6"))
        out.append(I(f"L_loop{tag}:"))
        body=[I("s_waitcnt vmcnt(0) lgkmcnt(0)")]+expand_prefetch(boundary(role,True),tag+"1",'cond')
        stp,l2,v2=finalize(st,l,v)
        bp,l3,v3=finalize(body,[],[],stp[-40:])
        assert len(l3)==len(l) or True
        out+=bp
        out.append(I(f"L_steps{tag}:"))
        stp,_,_=finalize([I("s_waitcnt lgkmcnt(0)")]+st,[],[],bp[-40:])
        out+=stp
        out.append(I(f"s_mov_b32 s{sOFFO}, s{sOFFC}"))
        out.append(I(f"s_sub_u32 s{sCNT}, s{sCNT}, 1"));
        out.append(I(f"s_cmp_lg_u32 s{sCNT}, 0"))
        out.append(I(f"s_cbranch_scc1 L_loop{tag}_pre"))
        fe,_,_=finalize([I("s_waitcnt vmcnt(0) lgkmcnt(0)")]+final_epi(),[],[],stp[-40:])
        out+=fe
        out.append(I("s_endpgm"))
        out.append(I(f"L_loop{tag}_pre:"))
        out.append(I(f"s_branch L_loop{tag}"))
    out.append(I("L_end:")); out.append(I("s_endpgm"))
    return out
HDR=open('standalone__modern_conv_block_convnext__vision.s.ref').read().split('\n')
def main(path):
    name="standalone__modern_conv_block_convnext__vision_kernel"
    hdr=[l for l in HDR if l.startswith(';') and not l.startswith('; @launch')]
    hdr=hdr[:hdr.index([l for l in hdr if 'Override launch' in l][0])+2]
    txt="\n".join(hdr)+f"\n; @launch grid=(256,1,1) block=(512,1,1) lds={LDSSZ}\n"
    txt+=f""".amdgcn_target "amdgcn-amd-amdhsa--gfx950"
.text
.globl {name}
.p2align 8
.type {name},@function
{name}:
"""
    for ins in build():
        t=ins.text
        txt+=(t if (ins.kind=='label' or t.startswith('.')) else "    "+t)+"\n"
    txt+=f""".section .rodata,"a"
.p2align 6
.amdhsa_kernel {name}
  .amdhsa_next_free_vgpr 256
  .amdhsa_next_free_sgpr 96
  .amdhsa_accum_offset 256
  .amdhsa_group_segment_fixed_size 0
  .amdhsa_kernarg_size 80
  .amdhsa_user_sgpr_count 2
  .amdhsa_user_sgpr_kernarg_segment_ptr 1
  .amdhsa_system_sgpr_workgroup_id_x 1
.end_amdhsa_kernel
"""
    open(path,'w').write(txt)
if __name__=='__main__':
    main(sys.argv[1] if len(sys.argv)>1 else 'standalone__modern_conv_block_convnext__vision.s')
```

```python
import sys, struct, math, argparse
from asmlib import *
def f2u(x): return struct.unpack('<I',struct.pack('<f',x))[0]
def hx(x): return f"0x{f2u(x):08x}"
k1=-2.0*math.sqrt(2.0/math.pi)*math.log2(math.e); k2=k1*0.044715
SC=(-k2)**(1.0/3.0); AC=k1/SC
vT=0; vW1a=1; vW1b=2; vW2a=3; vW2b=4; vP16=5; vFr=6; vG=7
vRHO=8; vT1=9; vT2=10; vT3=11
IR=12; XB=20; H=36; XC=60; XN=84; ACC=108; P=156; Z=204; G=228; AF=232
sX=4; sO=8; sW1=12; sW2=16; sS=20
sWAVE=24; sCNT=26; sOFFN=27; sOFFO=28; sOFFC=29; sA=30; sM96=31; sVS=32; sEPS=33; sSC=34; sISC=35
W2B=73728; PAR=147456; PB1=0; PG=1536; PGB=1920; PDW=2304; FR=PAR+2560; LDSSZ=FR+6144
def vr(b,n): return f"v[{b}:{b+n-1}]"
def MF(d,a,b,c=None):
    cs = vr(d,16) if c is None else (c if isinstance(c,str) else vr(c,16))
    return I(f"v_mfma_f32_32x32x16_bf16 {vr(d,16)}, {vr(a,4)}, {vr(b,4)}, {cs}")
def Preg(jj): return P+16*((jj//2)%3)+8*(jj%2)
def Pbuf(t): return P+16*(t%3)
def Zreg(jj): return Z+8*(jj%3)
def frag_w1(slot,t,ks):
    u=t*6+ks; base=vW1a if u<36 else vW1b; off=(u%36)*1024
    d=AF+4*slot
    if 'b128' in FLAGS: return [I(f"ds_read_b128 {vr(d,4)}, v{vT2} offset:{(u*1024)%65536}")]
    return [I(f"ds_read_b64_tr_b16 {vr(d,2)}, v{base} offset:{off}"), I(f"ds_read_b64_tr_b16 {vr(d+2,2)}, v{base} offset:{off+256}")]
def frag_w2(slot,jj,rt):
    u=jj*3+rt; base=vW2a if u<36 else vW2b; off=(u%36)*1024
    d=AF+4*slot
    if 'b128' in FLAGS: return [I(f"ds_read_b128 {vr(d,4)}, v{vT2} offset:{(u*1024+8192)%65536}")]
    return [I(f"ds_read_b64_tr_b16 {vr(d,2)}, v{base} offset:{off}"), I(f"ds_read_b64_tr_b16 {vr(d+2,2)}, v{base} offset:{off+512}")]
def bias_load(t):
    return [I(f"ds_read_b128 {vr(Pbuf(t)+4*m,4)}, v{vP16} offset:{PB1+128*t+32*m}") for m in range(4)]
NH=24
def interleave_x(T, M):
    if not M: return list(T)
    cost=[2 if x.trans else 1 for x in T]; tot=sum(cost)
    out=[]; n=len(M); k=0; acc=0
    for x,c in zip(T,cost):
        while k<n and acc>=k*tot/n-1e-9:
            out.append(M[k]); k+=1
        out.append(x); acc+=c
    out+=M[k:]
    return out
PRIO_S={0:0,1:2}
FLAGS=set()
def step_parts(j, role):
    Sa=[];Sb=[];Sc=[];Xe=[];Xr=[];Xc=[]
    if 0<=j+1<NH:
        p=Preg(j+1); z=Zreg(j+1)
        Sa+= [I(f"v_fma_f32 v{z+k}, -v{p+k}, v{p+k}, s{sA}") for k in range(8)]
        Sa+= [I(f"v_mul_f32 v{z+k}, v{z+k}, v{p+k}") for k in range(8)]
        Xe+= [I(f"v_exp_f32 v{z+k}, v{z+k}") for k in range(8)]
    if 0<=j<NH:
        z=Zreg(j)
        Sb+= [I(f"v_add_f32 v{z+k}, 1.0, v{z+k}") for k in range(8)]
        Xr+= [I(f"v_rcp_f32 v{z+k}, v{z+k}") for k in range(8)]
    if 0<=j-1<NH:
        z=Zreg(j-1); p=Preg(j-1)
        Sc+= [I(f"v_mul_f32 v{z+k}, v{z+k}, v{p+k}") for k in range(8)]
        Xc+= [I(f"v_cvt_pk_bf16_f32 v{G+k}, v{z+2*k}, v{z+2*k+1}") for k in range(4)]
    S=Sc+Sb+Sa
    def m1(jj):
        if jj+3<0: return None
        t=(jj+3)//2; part=(jj+3)%2
        return (t,part) if 0<=t<12 else None
    def m2(jj):
        q=jj-1
        return q if 0<=q<NH else None
    M=[]
    c1=m1(j); c2=m2(j)
    if c1:
        t,part=c1
        M+=[MF(Pbuf(t),AF+4*k,H+4*(3*part+k)) for k in range(3)]
    if c2 is not None:
        M+=[MF(ACC+16*k,AF+4*(3+k),G,"0" if c2==0 else None) for k in range(3)]
    if c1: X=interleave_x(Xc+Xr+Xe,M)
    else: X=Xc+interleave_x(Xr+Xe,M)
    jl=j+1 if role==0 else j
    L=[]
    n1=m1(jl); n2=m2(jl)
    if n1:
        t,part=n1
        for k in range(3): L+=frag_w1(k,t,3*part+k)
    if n2 is not None:
        for k in range(3): L+=frag_w2(3+k,n2,k)
    if (j+4)%2==0 and 0<=(j+4)//2<12:
        L+=bias_load((j+4)//2)
    if 'noL' in FLAGS and 2<=j<=20: L=[]
    if 'noM' in FLAGS and 2<=j<=20: X=[x for x in X if x.kind!='mfma']
    if 'noM2' in FLAGS and 2<=j<=20: X=[x for x in X if not (x.kind=='mfma' and x.defs[0][1]>=ACC and x.defs[0][1]<ACC+48)]
    if 'noT' in FLAGS and 2<=j<=20: X=[x for x in X if not x.trans]
    if 'noS' in FLAGS and 2<=j<=20: S=[]
    return S,X,L
def emit_step(j,role):
    S,X,L=step_parts(j,role)
    P1=[I("s_setprio 1")]; P0=[I(f"s_setprio {PRIO_S[role]}")]
    if role==0:
        W=[I("s_waitcnt lgkmcnt(0)")] if any(x.kind=='mfma' for x in X) else []
        return S+(P1+W+X+P0 if X else [])+L
    else:
        X2=[];seen=0
        nb=len([x for x in L if x.op=='ds_read_b128'])
        ntr=len(L)-nb
        mf=[x for x in X if x.kind=='mfma']
        has1=any(x.defs[0][1]>=P for x in mf); has2=any(x.defs[0][1]<P for x in mf)
        first2=None
        for x in X:
            if x.kind=='mfma' and x.defs[0][1]<P and first2 is None and has1:
                first2=x; X2.append(I(f"s_waitcnt lgkmcnt({nb})"))
            X2.append(x)
        W=[]
        if mf: W=[I(f"s_waitcnt lgkmcnt({min(15,(ntr-6+nb) if (has1 and has2) else nb)})")]
        return S+L+(P1+W+X2+P0 if X else [])
def epi_res(rt):
    return [MF(XB,IR,XC+8*rt),MF(XB,IR+4,XC+8*rt+4)]
def epi_ld_gb(rt): return [I(f"ds_read_b128 {vr(XB+4*m,4)}, v{vP16} offset:{PGB+128*rt+32*m}") for m in range(4)]
def epi_ld_g(rt,dst): return [I(f"ds_read_b128 {vr(dst+4*m,4)}, v{vP16} offset:{PG+128*rt+32*m}") for m in range(4)]
def epi_fma(rt,g): return [I(f"v_fma_f32 v{ACC+16*rt+r}, v{ACC+16*rt+r}, v{g+r}, v{XB+r}") for r in range(16)]
def epi_cvt(rt): return [I(f"v_cvt_pk_bf16_f32 v{ACC+16*rt+q}, v{ACC+16*rt+2*q}, v{ACC+16*rt+2*q+1}") for q in range(8)]
def epi_st(rt): return [I(f"buffer_store_dwordx4 {vr(ACC+16*rt+4*kl,4)}, v{vG}, s[{sO}:{sO+3}], s{sOFFO} offen offset:{(2*rt+kl)*32}") for kl in range(2)]
ROLE=[0]
def X_(l): return [I("s_setprio 1")]+l+[I(f"s_setprio {PRIO_S[ROLE[0]]}")]
def boundary(role, epi):
    o=[]
    DM=Z
    GT=H
    o+=[I(f"ds_read_b128 {vr(AF+4*k,4)}, v{vP16} offset:{PDW+32*k}") for k in range(6)]
    if epi: o+=epi_ld_gb(0)
    for k in range(6):
        o.append(MF(DM,AF+4*k,XN+4*k,"0" if k==0 else None))
        o.append(I(f"ds_read_b128 {vr(AF+4*k,4)}, v{vFr} offset:{1024*k}"))
    if epi:
        o+=epi_res(0); o+=epi_ld_g(0,GT)
    o+=[I(f"v_mul_f32 v{DM+r}, s{sM96}, v{DM+r}") for r in range(16)]
    for rt in range(3):
        o.append(MF(P+16*rt,AF+8*rt,XN+8*rt,DM))
    for rt in range(3):
        o.append(MF(P+16*rt,AF+8*rt+4,XN+8*rt+4))
    if epi:
        o+=epi_fma(0,GT)
        o+=epi_ld_gb(1); o+=epi_ld_g(1,GT)
        o+=X_(epi_cvt(0)); o+=epi_st(0)
        o+=epi_res(1)
    for k in range(3): o+=frag_w1(k,0,k)
    ss=[]
    for n in range(48):
        c=P+n; a=G+(n%4)
        if n<4: ss.append(I(f"v_mul_f32 v{a}, v{c}, v{c}"))
        else: ss.append(I(f"v_fma_f32 v{a}, v{c}, v{c}, v{a}"))
    o+=ss
    o+=[I(f"v_add_f32 v{G}, v{G}, v{G+1}"),I(f"v_add_f32 v{G+2}, v{G+2}, v{G+3}"),I(f"v_add_f32 v{G}, v{G}, v{G+2}"),
        I(f"v_mov_b32 v{vT1}, v{G}"),
        I(f"v_permlane32_swap_b32 v{vT1}, v{G}"),
        I(f"v_add_f32 v{G}, v{G}, v{vT1}"),
        I(f"v_fma_f32 v{G}, v{G}, s{sVS}, v{vT3}"),
        I(f"v_rsq_f32 v{vRHO}, v{G}")]
    if epi:
        o+=epi_fma(1,GT)
        o+=epi_ld_gb(2); o+=epi_ld_g(2,Z)
    for rt in range(3):
        o+=[I(f"v_mul_f32 v{P+16*rt+r}, v{vRHO}, v{P+16*rt+r}") for r in range(16)]
        if rt==0 and epi:
            o+=epi_res(2)
        o+=X_([I(f"v_cvt_pk_bf16_f32 v{H+8*rt+q}, v{P+16*rt+2*q}, v{P+16*rt+2*q+1}") for q in range(8)])
        if rt==0: o+=bias_load(0)
    mv=[I(f"v_mov_b32 v{XC+r}, v{XN+r}") for r in range(24)]
    for k in range(3):
        o.append(MF(Pbuf(0),AF+4*k,H+4*k)); o+=frag_w1(k,0,3+k)
    if epi:
        o+=X_(epi_cvt(1)); o+=epi_st(1)
    o+=mv
    o.append(I("PREFETCH"))
    for k in range(3):
        o.append(MF(Pbuf(0),AF+4*k,H+4*(3+k))); o+=frag_w1(k,1,k)
    o+=bias_load(1)
    if epi:
        o+=epi_fma(2,Z); o+=X_(epi_cvt(2)); o+=epi_st(2)
    return o
def final_epi():
    o=[]
    for rt in range(3):
        o+=epi_ld_gb(rt); o+=epi_ld_g(rt,H); o+=epi_res(rt); o+=epi_fma(rt,H); o+=epi_cvt(rt); o+=epi_st(rt)
    return o
def xloads(dst): return [I(f"buffer_load_dwordx4 {vr(dst+4*k,4)}, v{vG}, s[{sX}:{sX+3}], s{sOFFN} offen offset:{32*k}") for k in range(6)]
def steps(role):
    o=[]
    last=24
    for j in range(-1,last+1): o+=emit_step(j,role)
    return o
def finalize(prog, lds=None, vm=None, hist=None):
    p,l,v=insert_waits(prog,lds,vm)
    p=insert_nops(p,hist)
    return p,l,v
def expand_prefetch(prog, tag, do):
    out=[]
    for ins in prog:
        if ins.op=='PREFETCH':
            if do=='always': out+=xloads(XN)
            else:
                out+= [I(f"s_mov_b32 s{sOFFC}, s{sOFFN}"),I(f"s_cmp_eq_u32 s{sCNT}, 1"),I(f"s_cbranch_scc1 L_nopf_{tag}"),I(f"s_add_u32 s{sOFFN}, s{sOFFN}, {2048*6144}")]+xloads(XN)+[I(f"L_nopf_{tag}:")]
        else: out.append(ins)
    return out
def prologue():
    o=[]
    A=lambda t:o.append(I(t))
    A("s_cmp_ge_u32 s2, 256"); A("s_cbranch_scc1 L_end")
    A("s_load_dwordx16 s[36:51], s[0:1], 0")
    A(f"v_lshrrev_b32 v{vT1}, 6, v0")
    A(f"v_mov_b32 v{vT2}, v0")
    A(f"v_and_b32 v{vT}, 63, v0")
    A(f"v_readfirstlane_b32 s{sWAVE}, v{vT1}")
    A(f"s_mov_b32 s{sA}, {hx(AC)}"); A(f"s_mov_b32 s{sM96}, {hx(-1.0/96)}"); A(f"s_mov_b32 s{sVS}, {hx(1.0/(96*SC*SC))}")
    A(f"s_mov_b32 s{sSC}, {hx(SC)}"); A(f"s_mov_b32 s{sISC}, {hx(1.0/SC)}")
    A(f"v_mov_b32 v{vT3}, {hx(1e-5/(SC*SC))}")
    L=vT; t0=P
    A(f"v_lshrrev_b32 v{t0}, 5, v{L}")
    A(f"v_and_b32 v{t0+1}, 31, v{L}")
    A(f"v_mul_u32_u24 v{vG}, 192, v{t0+1}"); A(f"v_lshl_add_u32 v{vG}, v{t0}, 4, v{vG}")
    A(f"v_lshlrev_b32 v{vP16}, 4, v{t0}"); A(f"v_add_u32 v{vP16}, {PAR}, v{vP16}")
    A(f"v_lshlrev_b32 v{vFr}, 4, v{L}"); A(f"v_add_u32 v{vFr}, {FR}, v{vFr}")
    A(f"s_lshl_b32 s{sOFFN}, s2, 3"); A(f"s_add_u32 s{sOFFN}, s{sOFFN}, s{sWAVE}"); A(f"s_mul_i32 s{sOFFN}, s{sOFFN}, 6144")
    A("s_waitcnt lgkmcnt(0)")
    def srd(d,p,n):
        A(f"s_mov_b32 s{d}, s{p}"); A(f"s_and_b32 s{d+1}, s{p+1}, 0xffff"); A(f"s_mov_b32 s{d+2}, {n}"); A(f"s_mov_b32 s{d+3}, 0x20000")
    srd(sX,36,50331648); srd(sO,50,50331648); srd(sW1,40,73728); srd(sW2,44,73728)
    srd(52,38,192); srd(56,42,768); srd(60,46,192); srd(64,48,192)
    q=P+8
    A(f"v_lshlrev_b32 v{q}, 1, v{vT2}")
    A(f"buffer_load_ushort v{q+1}, v{q}, s[56:59], 0 offen")
    A(f"v_lshlrev_b32 v{q+2}, 2, v{L}")
    A(f"buffer_load_dword v{q+3}, v{q+2}, s[64:67], 0 offen")
    A(f"buffer_load_dword v{q+4}, v{q+2}, s[60:63], 0 offen")
    A(f"buffer_load_dword v{q+5}, v{q+2}, s[52:55], 0 offen")
    A(f"s_lshl_b32 s68, s{sWAVE}, 5"); A("s_min_u32 s68, s68, 160")
    A(f"v_lshlrev_b32 v{q+6}, 4, v{t0}")
    A(f"buffer_load_dwordx4 {vr(q+8,4)}, v{q+6}, s[52:55], s68 offen")
    o.extend(xloads(XN))
    d=P+24
    A(f"v_lshrrev_b32 v{d}, 2, v{L}")
    A(f"v_and_b32 v{d+1}, 3, v{L}")
    A(f"v_mul_u32_u24 v{d+2}, 768, v{d}"); A(f"v_lshl_add_u32 v{d+2}, v{d+1}, 4, v{d+2}")
    A(f"v_mul_u32_u24 v{d+3}, 192, v{d}"); A(f"v_lshl_add_u32 v{d+3}, v{d+1}, 4, v{d+3}")
    for n in range(9):
        A(f"s_add_u32 s70, s{sWAVE}, {8*n}")
        A(f"s_mul_i32 s71, s70, 43"); A("s_lshr_b32 s71, s71, 8")
        A("s_mul_i32 s72, s71, 6"); A("s_sub_u32 s72, s70, s72")
        A(f"s_mul_i32 s72, s72, {16*768}"); A("s_lshl_b32 s71, s71, 6"); A("s_add_u32 s71, s71, s72")
        A("s_lshl_b32 m0, s70, 10")
        A(f"buffer_load_dwordx4 v{d+2}, s[{sW1}:{sW1+3}], s71 offen lds")
        A("s_mul_i32 s71, s70, 86"); A("s_lshr_b32 s71, s71, 8")
        A("s_mul_i32 s72, s71, 3"); A("s_sub_u32 s72, s70, s72")
        A("s_mul_i32 s71, s71, 3072"); A("s_lshl_b32 s72, s72, 6"); A("s_add_u32 s71, s71, s72")
        A("s_lshl_b32 s73, s70, 10"); A(f"s_add_u32 m0, s73, {W2B}")
        A(f"buffer_load_dwordx4 v{d+3}, s[{sW2}:{sW2+3}], s71 offen lds")
    e=P+32
    A(f"v_bfe_u32 v{e}, v{L}, 4, 1")
    A(f"v_bfe_u32 v{e+1}, v{L}, 2, 2")
    A(f"v_and_b32 v{e+2}, 3, v{L}")
    A(f"v_lshlrev_b32 v{e+3}, 6, v{e+1}")
    A(f"v_lshl_add_u32 v{e+3}, v{e}, 5, v{e+3}")
    A(f"v_lshl_add_u32 v{vW1a}, v{e+2}, 3, v{e+3}")
    A(f"v_lshl_add_u32 v{vW1a}, v{t0}, 9, v{vW1a}")
    A(f"v_add_u32 v{vW1b}, 36864, v{vW1a}")
    A(f"v_and_b32 v{e+4}, 1, v{L}"); A(f"v_bfe_u32 v{e+5}, v{L}, 1, 1")
    A(f"v_lshl_add_u32 v{e+3}, v{e+4}, 4, v{e+3}"); A(f"v_lshl_add_u32 v{e+3}, v{e+5}, 3, v{e+3}")
    A(f"v_lshl_add_u32 v{vW2a}, v{t0}, 8, v{e+3}")
    A(f"v_add_u32 v{vW2a}, {W2B}, v{vW2a}"); A(f"v_add_u32 v{vW2b}, 36864, v{vW2a}")
    m=Z
    A(f"v_bfe_u32 v{m}, v{L}, 2, 1")
    A(f"v_and_b32 v{m+1}, 1, v{L}")
    A(f"v_mov_b32 v{m+2}, 0xffff"); A(f"v_mov_b32 v{m+3}, 0xffff0000")
    A(f"v_cmp_eq_u32 vcc, 1, v{m+1}"); A(f"v_cndmask_b32 v{m+2}, v{m+2}, v{m+3}, vcc")
    A(f"v_cmp_eq_u32 vcc, v{m}, v{t0}"); A(f"v_cndmask_b32 v{m+2}, 0, v{m+2}, vcc")
    A(f"v_bfe_u32 v{m+3}, v{L}, 4, 1"); A(f"v_bfe_u32 v{m+4}, v{L}, 3, 1"); A(f"v_bfe_u32 v{m+5}, v{L}, 1, 1")
    A(f"v_lshlrev_b32 v{m+3}, 2, v{m+3}"); A(f"v_lshl_add_u32 v{m+3}, v{m+4}, 1, v{m+3}"); A(f"v_add_u32 v{m+3}, v{m+3}, v{m+5}")
    for n in range(8):
        A(f"v_cmp_eq_u32 vcc, {n}, v{m+3}"); A(f"v_cndmask_b32 v{m+8+n}, 0, v{m+2}, vcc")
    for n in range(8): A(f"v_and_b32 v{IR+n}, 0x3f803f80, v{m+8+n}")
    A("s_waitcnt vmcnt(24)")
    A(f"s_cmp_ge_u32 s{sWAVE}, 6"); A("s_cbranch_scc1 L_p67")
    A(f"v_lshlrev_b32 v{q+1}, 16, v{q+1}"); A(f"v_mul_f32 v{q+1}, s{sSC}, v{q+1}")
    A(f"v_lshlrev_b32 v{q}, 2, v{vT2}"); A(f"v_add_u32 v{q}, {PAR+PB1}, v{q}"); A(f"ds_write_b32 v{q}, v{q+1}")
    A(f"s_bitcmp1_b32 s{sWAVE}, 0"); A("s_cbranch_scc0 L_kl0")
    for n in range(4): A(f"v_mov_b32 v{m+8+n}, v{m+12+n}")
    A("L_kl0:")
    for n in range(4): A(f"v_and_b32 v{q+8+n}, v{q+8+n}, v{m+8+n}")
    A(f"s_lshl_b32 s68, s{sWAVE}, 10"); A(f"v_add_u32 v{q}, s68, v{vFr}"); A(f"ds_write_b128 v{q}, {vr(q+8,4)}")
    A("s_branch L_pdone")
    A("L_p67:")
    A(f"v_cmp_gt_u32 vcc, 48, v{L}"); A("s_and_saveexec_b64 s[74:75], vcc")
    A(f"s_cmp_eq_u32 s{sWAVE}, 7"); A("s_cbranch_scc1 L_p7")
    A(f"v_lshlrev_b32 v{q+8}, 16, v{q+3}"); A(f"v_and_b32 v{q+9}, 0xffff0000, v{q+3}")
    A(f"v_lshlrev_b32 v{q+10}, 16, v{q+4}"); A(f"v_and_b32 v{q+11}, 0xffff0000, v{q+4}")
    A(f"v_mul_f32 v{q+10}, v{q+8}, v{q+10}"); A(f"v_mul_f32 v{q+11}, v{q+9}, v{q+11}")
    A(f"v_mul_f32 v{q+8}, s{sISC}, v{q+8}"); A(f"v_mul_f32 v{q+9}, s{sISC}, v{q+9}")
    A(f"v_lshrrev_b32 v{q}, 4, v{L}"); A(f"v_lshlrev_b32 v{q}, 7, v{q}")
    A(f"v_bfe_u32 v{q+1}, v{L}, 3, 1"); A(f"v_lshl_add_u32 v{q}, v{q+1}, 6, v{q}")
    A(f"v_bfe_u32 v{q+1}, v{L}, 1, 1"); A(f"v_lshl_add_u32 v{q}, v{q+1}, 5, v{q}")
    A(f"v_bfe_u32 v{q+1}, v{L}, 2, 1"); A(f"v_lshl_add_u32 v{q}, v{q+1}, 4, v{q}")
    A(f"v_and_b32 v{q+1}, 1, v{L}"); A(f"v_lshl_add_u32 v{q}, v{q+1}, 3, v{q}")
    A(f"v_add_u32 v{q}, {PAR}, v{q}")
    A(f"ds_write_b64 v{q}, {vr(q+8,2)} offset:{PG}"); A(f"ds_write_b64 v{q}, {vr(q+10,2)} offset:{PGB}")
    A("s_branch L_p67e")
    A("L_p7:")
    A(f"v_add_u32 v{q}, {PAR+PDW}, v{q+2}"); A(f"ds_write_b32 v{q}, v{q+5}")
    A("L_p67e:")
    A("s_mov_b64 exec, s[74:75]")
    A("L_pdone:")
    if 'b128' in FLAGS: A(f"v_lshlrev_b32 v{vT2}, 4, v{L}")
    A("s_waitcnt vmcnt(0) lgkmcnt(0)")
    A("s_barrier")
    return o
STAMP=False
nst=[0]
def stamp(k):
    if not STAMP: return []
    return [I(f"s_memtime s[{76+2*k}:{77+2*k}]"),I("s_memrealtime s[96:97]"),I("s_waitcnt lgkmcnt(0)"),I(f"s_mov_b32 s{77+2*k}, s96")]
def stamp_loop(tag):
    if not STAMP: return []
    o=[]
    for c in range(4,0,-1):
        o+=[I(f"s_cmp_lg_u32 s{sCNT}, {c}"),I(f"s_cbranch_scc1 L_st{tag}{c}"),I(f"s_memtime s[{76+2*(7-c)}:{77+2*(7-c)}]"),I("s_memrealtime s[96:97]"),I("s_waitcnt lgkmcnt(0)"),I(f"s_mov_b32 s{77+2*(7-c)}, s96"),I(f"L_st{tag}{c}:")]
    return o
def stamp_end():
    if not STAMP: return []
    o=[I("s_waitcnt vmcnt(0)"),I("s_memtime s[90:91]"),I("s_memrealtime s[92:93]"),I("s_load_dwordx2 s[36:37], s[0:1], 72"),I("s_waitcnt lgkmcnt(0)"),I("s_mov_b32 s91, s92"),
       I("s_lshl_b32 s38, s2, 3"),I(f"s_add_u32 s38, s38, s{sWAVE}"),I("s_lshl_b32 s38, s38, 7"),I("v_mov_b32 v14, s38")]
    for k in range(8):
        o+=[I(f"v_mov_b32 v12, s{76+2*k}"),I(f"v_mov_b32 v13, s{77+2*k}"),I(f"global_store_dwordx2 v14, v[12:13], s[36:37] offset:{8*k}"),I("s_nop 1")]
    o+=[I("v_mov_b32 v12, s92"),I("v_mov_b32 v13, s93"),I("global_store_dwordx2 v14, v[12:13], s[36:37] offset:112"),I("s_nop 1")]
    o+=[I("v_mov_b32 v12, s94"),I("v_mov_b32 v13, s95"),I("global_store_dwordx2 v14, v[12:13], s[36:37] offset:120")]
    return o
def build():
    out=[]
    pro=prologue()
    p,l,v=finalize(pro)
    if STAMP: p=p[:2]+[I("s_memrealtime s[94:95]")]+stamp(0)+p[2:]
    out+=p
    out+=stamp(1)
    out.append(I(f"s_mov_b32 s{sCNT}, 4"))
    out.append(I(f"s_cmp_ge_u32 s{sWAVE}, 4")); out.append(I("s_cbranch_scc1 L_roleB"))
    for role in (0,1):
        tag="AB"[role]; ROLE[0]=role
        if role==1: out.append(I("L_roleB:"))
        out.append(I(f"s_setprio {PRIO_S[role]}"))
        first=expand_prefetch(boundary(role,False),tag+"0",'cond')
        st=steps(role)
        p,l,v=finalize(first); out+=p
        out+=stamp(2)
        out.append(I("s_nop 7")); out.append(I(f"s_branch L_steps{tag}"))
        out.append(I(".p2align 6"))
        out.append(I(f"L_loop{tag}:"))
        body=[I("s_waitcnt vmcnt(0) lgkmcnt(0)")]+expand_prefetch(boundary(role,True),tag+"1",'cond')
        stp,l2,v2=finalize(st,l,v)
        bp,l3,v3=finalize(body,[],[],stp[-40:])
        assert len(l3)==len(l) or True
        out+=bp
        out.append(I(f"L_steps{tag}:"))
        stp,_,_=finalize([I("s_waitcnt lgkmcnt(0)")]+st,[],[],bp[-40:])
        out+=stp
        out+=stamp_loop(tag)
        out.append(I(f"s_mov_b32 s{sOFFO}, s{sOFFC}"))
        out.append(I(f"s_sub_u32 s{sCNT}, s{sCNT}, 1"));
        out.append(I(f"s_cmp_lg_u32 s{sCNT}, 0"))
        out.append(I(f"s_cbranch_scc1 L_loop{tag}_pre"))
        fe,_,_=finalize([I("s_waitcnt vmcnt(0) lgkmcnt(0)")]+final_epi(),[],[],stp[-40:])
        out+=fe
        out+=stamp_end()
        out.append(I("s_endpgm"))
        out.append(I(f"L_loop{tag}_pre:"))
        out.append(I(f"s_branch L_loop{tag}"))
    out.append(I("L_end:")); out.append(I("s_endpgm"))
    return out
HDR=open('standalone__modern_conv_block_convnext__vision.s.ref').read().split('\n')
def main(path):
    name="standalone__modern_conv_block_convnext__vision_kernel"
    hdr=[l for l in HDR if l.startswith(';') and not l.startswith('; @launch')]
    hdr=hdr[:hdr.index([l for l in hdr if 'Override launch' in l][0])+2]
    txt="\n".join(hdr)+f"\n; @launch grid=(256,1,1) block=(512,1,1) lds={LDSSZ}\n"
    txt+=f""".amdgcn_target "amdgcn-amd-amdhsa--gfx950"
.text
.globl {name}
.p2align 8
.type {name},@function
{name}:
"""
    for ins in build():
        t=ins.text
        txt+=(t if (ins.kind=='label' or t.startswith('.')) else "    "+t)+"\n"
    txt+=f""".section .rodata,"a"
.p2align 6
.amdhsa_kernel {name}
  .amdhsa_next_free_vgpr 256
  .amdhsa_next_free_sgpr 100
  .amdhsa_accum_offset 256
  .amdhsa_group_segment_fixed_size 0
  .amdhsa_kernarg_size 80
  .amdhsa_user_sgpr_count 2
  .amdhsa_user_sgpr_kernarg_segment_ptr 1
  .amdhsa_system_sgpr_workgroup_id_x 1
.end_amdhsa_kernel
"""
    open(path,'w').write(txt)
if __name__=='__main__':
    for a in sys.argv[2:]:
        for f in a.split(','):
            if f=='stamp': STAMP=True
            else: FLAGS.add(f)
    main(sys.argv[1] if len(sys.argv)>1 else 'standalone__modern_conv_block_convnext__vision.s')
```

```python
import sys, struct, math, argparse
from asmlib import *
def f2u(x): return struct.unpack('<I',struct.pack('<f',x))[0]
def hx(x): return f"0x{f2u(x):08x}"
k1=-2.0*math.sqrt(2.0/math.pi)*math.log2(math.e); k2=k1*0.044715
SC=(-k2)**(1.0/3.0); AC=k1/SC
vT=0; vW1a=1; vW1b=2; vW2a=3; vW2b=4; vP16=5; vFr=6; vG=7
vRHO=8; vT1=9; vT2=10; vT3=11
IR=12; XB=20; H=36; XC=60; XN=84; ACC=108; P=156; Z=204; G=228; AF=232
sX=4; sO=8; sW1=12; sW2=16; sS=20
sWAVE=24; sCNT=26; sOFFN=27; sOFFO=28; sOFFC=29; sA=30; sM96=31; sVS=32; sEPS=33; sSC=34; sISC=35
W2B=73728; PAR=147456; PB1=0; PG=1536; PGB=1920; PDW=2304; FR=PAR+2560; LDSSZ=FR+6144
def vr(b,n): return f"v[{b}:{b+n-1}]"
def MF(d,a,b,c=None):
    cs = vr(d,16) if c is None else (c if isinstance(c,str) else vr(c,16))
    return I(f"v_mfma_f32_32x32x16_bf16 {vr(d,16)}, {vr(a,4)}, {vr(b,4)}, {cs}")
def Preg(jj): return P+16*((jj//2)%3)+8*(jj%2)
def Pbuf(t): return P+16*(t%3)
def Zreg(jj): return Z+8*(jj%3)
def frag_w1(slot,t,ks):
    u=t*6+ks; base=vW1a if u<36 else vW1b; off=(u%36)*1024
    d=AF+4*slot
    if 'b128' in FLAGS: return [I(f"ds_read_b128 {vr(d,4)}, v{vT2} offset:{(u*1024)%65536}")]
    return [I(f"ds_read_b64_tr_b16 {vr(d,2)}, v{base} offset:{off}"), I(f"ds_read_b64_tr_b16 {vr(d+2,2)}, v{base} offset:{off+256}")]
def frag_w2(slot,jj,rt):
    u=jj*3+rt; base=vW2a if u<36 else vW2b; off=(u%36)*1024
    d=AF+4*slot
    if 'b128' in FLAGS: return [I(f"ds_read_b128 {vr(d,4)}, v{vT2} offset:{(u*1024+8192)%65536}")]
    return [I(f"ds_read_b64_tr_b16 {vr(d,2)}, v{base} offset:{off}"), I(f"ds_read_b64_tr_b16 {vr(d+2,2)}, v{base} offset:{off+512}")]
def bias_load(t):
    return [I(f"ds_read_b128 {vr(Pbuf(t)+4*m,4)}, v{vP16} offset:{PB1+128*t+32*m}") for m in range(4)]
NH=24
def interleave_x(T, M):
    if not M: return list(T)
    cost=[2 if x.trans else 1 for x in T]; tot=sum(cost)
    out=[]; n=len(M); k=0; acc=0
    for x,c in zip(T,cost):
        while k<n and acc>=k*tot/n-1e-9:
            out.append(M[k]); k+=1
        out.append(x); acc+=c
    out+=M[k:]
    return out
PRIO_S={0:0,1:2}
FLAGS=set()
def step_parts(j, role):
    Sa=[];Sb=[];Sc=[];Xe=[];Xr=[];Xc=[]
    if 0<=j+1<NH:
        p=Preg(j+1); z=Zreg(j+1)
        Sa+= [I(f"v_fma_f32 v{z+k}, -v{p+k}, v{p+k}, s{sA}") for k in range(8)]
        Sa+= [I(f"v_mul_f32 v{z+k}, v{z+k}, v{p+k}") for k in range(8)]
        Xe+= [I(f"v_exp_f32 v{z+k}, v{z+k}") for k in range(8)]
    if 0<=j<NH:
        z=Zreg(j)
        Sb+= [I(f"v_add_f32 v{z+k}, 1.0, v{z+k}") for k in range(8)]
        Xr+= [I(f"v_rcp_f32 v{z+k}, v{z+k}") for k in range(8)]
    if 0<=j-1<NH:
        z=Zreg(j-1); p=Preg(j-1)
        Sc+= [I(f"v_mul_f32 v{z+k}, v{z+k}, v{p+k}") for k in range(8)]
        Xc+= [I(f"v_cvt_pk_bf16_f32 v{G+k}, v{z+2*k}, v{z+2*k+1}") for k in range(4)]
    S=Sc+Sb+Sa
    def m1(jj):
        if jj+3<0: return None
        t=(jj+3)//2; part=(jj+3)%2
        return (t,part) if 0<=t<12 else None
    def m2(jj):
        q=jj-1
        return q if 0<=q<NH else None
    M=[]
    c1=m1(j); c2=m2(j)
    if c1:
        t,part=c1
        M+=[MF(Pbuf(t),AF+4*k,H+4*(3*part+k)) for k in range(3)]
    if c2 is not None:
        M+=[MF(ACC+16*k,AF+4*(3+k),G,"0" if c2==0 else None) for k in range(3)]
    if c1: X=interleave_x(Xc+Xr+Xe,M)
    else: X=Xc+interleave_x(Xr+Xe,M)
    jl=j+1 if role==0 else j
    L=[]
    n1=m1(jl); n2=m2(jl)
    if n1:
        t,part=n1
        for k in range(3): L+=frag_w1(k,t,3*part+k)
    if n2 is not None:
        for k in range(3): L+=frag_w2(3+k,n2,k)
    if (j+4)%2==0 and 0<=(j+4)//2<12:
        L+=bias_load((j+4)//2)
    if 'noL' in FLAGS and 2<=j<=20: L=[]
    if 'noM' in FLAGS and 2<=j<=20: X=[x for x in X if x.kind!='mfma']
    if 'noM2' in FLAGS and 2<=j<=20: X=[x for x in X if not (x.kind=='mfma' and x.defs[0][1]>=ACC and x.defs[0][1]<ACC+48)]
    if 'noT' in FLAGS and 2<=j<=20: X=[x for x in X if not x.trans]
    if 'noS' in FLAGS and 2<=j<=20: S=[]
    return S,X,L
def emit_step(j,role):
    S,X,L=step_parts(j,role)
    P1=[I("s_setprio 1")]; P0=[I(f"s_setprio {PRIO_S[role]}")]
    if role==0:
        W=[I("s_waitcnt lgkmcnt(0)")] if any(x.kind=='mfma' for x in X) else []
        return S+(P1+W+X+P0 if X else [])+L
    else:
        X2=[];seen=0
        nb=len([x for x in L if x.op=='ds_read_b128'])
        ntr=len(L)-nb
        mf=[x for x in X if x.kind=='mfma']
        has1=any(x.defs[0][1]>=P for x in mf); has2=any(x.defs[0][1]<P for x in mf)
        first2=None
        for x in X:
            if x.kind=='mfma' and x.defs[0][1]<P and first2 is None and has1:
                first2=x; X2.append(I(f"s_waitcnt lgkmcnt({nb})"))
            X2.append(x)
        W=[]
        if mf: W=[I(f"s_waitcnt lgkmcnt({min(15,(ntr-6+nb) if (has1 and has2) else nb)})")]
        return S+L+(P1+W+X2+P0 if X else [])
def epi_res(rt):
    return [MF(XB,IR,XC+8*rt),MF(XB,IR+4,XC+8*rt+4)]
def epi_ld_gb(rt): return [I(f"ds_read_b128 {vr(XB+4*m,4)}, v{vP16} offset:{PGB+128*rt+32*m}") for m in range(4)]
def epi_ld_g(rt,dst): return [I(f"ds_read_b128 {vr(dst+4*m,4)}, v{vP16} offset:{PG+128*rt+32*m}") for m in range(4)]
def epi_fma(rt,g): return [I(f"v_fma_f32 v{ACC+16*rt+r}, v{ACC+16*rt+r}, v{g+r}, v{XB+r}") for r in range(16)]
def epi_cvt(rt): return [I(f"v_cvt_pk_bf16_f32 v{ACC+16*rt+q}, v{ACC+16*rt+2*q}, v{ACC+16*rt+2*q+1}") for q in range(8)]
def epi_st(rt): return [I(f"buffer_store_dwordx4 {vr(ACC+16*rt+4*kl,4)}, v{vG}, s[{sO}:{sO+3}], s{sOFFO} offen offset:{(2*rt+kl)*32}") for kl in range(2)]
ROLE=[0]
def X_(l): return [I("s_setprio 1")]+l+[I(f"s_setprio {PRIO_S[ROLE[0]]}")]
def boundary(role, epi):
    o=[]
    DM=Z
    GT=H
    o+=[I(f"ds_read_b128 {vr(AF+4*k,4)}, v{vP16} offset:{PDW+32*k}") for k in range(6)]
    if epi: o+=epi_ld_gb(0)
    for k in range(6):
        o.append(MF(DM,AF+4*k,XN+4*k,"0" if k==0 else None))
        o.append(I(f"ds_read_b128 {vr(AF+4*k,4)}, v{vFr} offset:{1024*k}"))
    if epi:
        o+=epi_res(0); o+=epi_ld_g(0,GT)
    o+=[I(f"v_mul_f32 v{DM+r}, s{sM96}, v{DM+r}") for r in range(16)]
    for rt in range(3):
        o.append(MF(P+16*rt,AF+8*rt,XN+8*rt,DM))
    for rt in range(3):
        o.append(MF(P+16*rt,AF+8*rt+4,XN+8*rt+4))
    if epi:
        o+=epi_fma(0,GT)
        o+=epi_ld_gb(1); o+=epi_ld_g(1,GT)
        o+=X_(epi_cvt(0)); o+=epi_st(0)
        o+=epi_res(1)
    if not epi: o+=[I("s_waitcnt vmcnt(15)"),I("s_barrier")]
    for k in range(3): o+=frag_w1(k,0,k)
    ss=[]
    for n in range(48):
        c=P+n; a=G+(n%4)
        if n<4: ss.append(I(f"v_mul_f32 v{a}, v{c}, v{c}"))
        else: ss.append(I(f"v_fma_f32 v{a}, v{c}, v{c}, v{a}"))
    o+=ss
    o+=[I(f"v_add_f32 v{G}, v{G}, v{G+1}"),I(f"v_add_f32 v{G+2}, v{G+2}, v{G+3}"),I(f"v_add_f32 v{G}, v{G}, v{G+2}"),
        I(f"v_mov_b32 v{vT1}, v{G}"),
        I(f"v_permlane32_swap_b32 v{vT1}, v{G}"),
        I(f"v_add_f32 v{G}, v{G}, v{vT1}"),
        I(f"v_fma_f32 v{G}, v{G}, s{sVS}, v{vT3}"),
        I(f"v_rsq_f32 v{vRHO}, v{G}")]
    if epi:
        o+=epi_fma(1,GT)
        o+=epi_ld_gb(2); o+=epi_ld_g(2,Z)
    for rt in range(3):
        o+=[I(f"v_mul_f32 v{P+16*rt+r}, v{vRHO}, v{P+16*rt+r}") for r in range(16)]
        if rt==0 and epi:
            o+=epi_res(2)
        o+=X_([I(f"v_cvt_pk_bf16_f32 v{H+8*rt+q}, v{P+16*rt+2*q}, v{P+16*rt+2*q+1}") for q in range(8)])
        if rt==0: o+=bias_load(0)
    mv=[I(f"v_mov_b32 v{XC+r}, v{XN+r}") for r in range(24)]
    for k in range(3):
        o.append(MF(Pbuf(0),AF+4*k,H+4*k)); o+=frag_w1(k,0,3+k)
    if epi:
        o+=X_(epi_cvt(1)); o+=epi_st(1)
    o+=mv
    o.append(I("PREFETCH"))
    for k in range(3):
        o.append(MF(Pbuf(0),AF+4*k,H+4*(3+k))); o+=frag_w1(k,1,k)
    o+=bias_load(1)
    if epi:
        o+=epi_fma(2,Z); o+=X_(epi_cvt(2)); o+=epi_st(2)
    return o
def final_epi():
    o=[]
    for rt in range(3):
        o+=epi_ld_gb(rt); o+=epi_ld_g(rt,H); o+=epi_res(rt); o+=epi_fma(rt,H); o+=epi_cvt(rt); o+=epi_st(rt)
    return o
def xloads(dst): return [I(f"buffer_load_dwordx4 {vr(dst+4*k,4)}, v{vG}, s[{sX}:{sX+3}], s{sOFFN} offen offset:{32*k}") for k in range(6)]
def steps(role):
    o=[]
    last=24
    for j in range(-1,last+1):
        if j==0: o+=[I("s_waitcnt vmcnt(15)"),I("s_barrier")]
        if j==8: o+=[I("s_waitcnt vmcnt(6)"),I("s_barrier")]
        o+=emit_step(j,role)
    return o
def finalize(prog, lds=None, vm=None, hist=None):
    p,l,v=insert_waits(prog,lds,vm)
    p=insert_nops(p,hist)
    return p,l,v
def expand_prefetch(prog, tag, do):
    out=[]
    for ins in prog:
        if ins.op=='PREFETCH':
            if do=='always': out+=xloads(XN)
            else:
                out+= [I(f"s_mov_b32 s{sOFFC}, s{sOFFN}"),I(f"s_cmp_eq_u32 s{sCNT}, 1"),I(f"s_cbranch_scc1 L_nopf_{tag}"),I(f"s_add_u32 s{sOFFN}, s{sOFFN}, {2048*6144}")]+xloads(XN)+[I(f"L_nopf_{tag}:")]
        else: out.append(ins)
    return out
def prologue():
    o=[]
    A=lambda t:o.append(I(t))
    A("s_cmp_ge_u32 s2, 256"); A("s_cbranch_scc1 L_end")
    A("s_load_dwordx16 s[36:51], s[0:1], 0")
    A(f"v_lshrrev_b32 v{vT1}, 6, v0")
    A(f"v_mov_b32 v{vT2}, v0")
    A(f"v_and_b32 v{vT}, 63, v0")
    A(f"v_readfirstlane_b32 s{sWAVE}, v{vT1}")
    L=vT; t0=P
    A(f"v_lshrrev_b32 v{t0}, 5, v{L}")
    A(f"v_and_b32 v{t0+1}, 31, v{L}")
    A(f"v_mul_u32_u24 v{vG}, 192, v{t0+1}"); A(f"v_lshl_add_u32 v{vG}, v{t0}, 4, v{vG}")
    q=P+8
    A(f"v_lshlrev_b32 v{q}, 1, v{vT2}")
    A(f"v_lshlrev_b32 v{q+2}, 2, v{L}")
    A(f"v_lshlrev_b32 v{q+6}, 4, v{t0}")
    A(f"s_lshl_b32 s{sOFFN}, s2, 3"); A(f"s_add_u32 s{sOFFN}, s{sOFFN}, s{sWAVE}"); A(f"s_mul_i32 s{sOFFN}, s{sOFFN}, 6144")
    A(f"s_lshl_b32 s68, s{sWAVE}, 5"); A("s_min_u32 s68, s68, 160")
    A(f"s_and_b32 s16, s{sWAVE}, 3")
    A(f"s_cmp_ge_u32 s{sWAVE}, 4")
    A("s_cselect_b32 s17, 86, 43")
    A("s_cselect_b32 s18, 3, 6")
    A("s_cselect_b32 s19, 3072, 64")
    A("s_cselect_b32 s20, 64, 12288")
    A("s_cselect_b32 s21, 3, 12")
    A("s_cselect_b32 s22, 0x60, 1")
    A(f"s_cselect_b32 s23, {W2B}, 0")
    A("s_lshl_b32 s21, s21, 6"); A("s_lshl_b32 s22, s22, 7")
    A("s_lshl_b32 s73, s16, 10"); A("s_add_u32 s23, s23, s73")
    d=P+24
    A(f"v_lshrrev_b32 v{d}, 2, v{L}")
    A(f"v_and_b32 v{d+1}, 3, v{L}")
    A(f"v_mul_lo_u32 v{d+2}, v{d}, s21"); A(f"v_lshl_add_u32 v{d+2}, v{d+1}, 4, v{d+2}")
    for i in range(3):
        A(f"s_add_u32 s73, s16, {4*i}")
        A("s_mul_i32 s74, s73, s17"); A("s_lshr_b32 s74, s74, 8")
        A("s_mul_i32 s75, s74, s18"); A("s_sub_u32 s75, s73, s75")
        A("s_mul_i32 s74, s74, s19"); A("s_mul_i32 s75, s75, s20"); A(f"s_add_u32 s{70+i}, s74, s75")
    A("s_waitcnt lgkmcnt(0)")
    def srd(d,p,n):
        A(f"s_mov_b32 s{d}, s{p}"); A(f"s_and_b32 s{d+1}, s{p+1}, 0xffff"); A(f"s_mov_b32 s{d+2}, {n}"); A(f"s_mov_b32 s{d+3}, 0x20000")
    srd(56,42,768); srd(64,48,192); srd(60,46,192); srd(52,38,192)
    A(f"buffer_load_ushort v{q+1}, v{q}, s[56:59], 0 offen")
    A(f"buffer_load_dword v{q+3}, v{q+2}, s[64:67], 0 offen")
    A(f"buffer_load_dword v{q+4}, v{q+2}, s[60:63], 0 offen")
    A(f"buffer_load_dword v{q+5}, v{q+2}, s[52:55], 0 offen")
    A(f"buffer_load_dwordx4 {vr(q+8,4)}, v{q+6}, s[52:55], s68 offen")
    srd(sX,36,50331648)
    o.extend(xloads(XN))
    A(f"s_cmp_ge_u32 s{sWAVE}, 4")
    A(f"s_cselect_b32 s{sW1}, s44, s40"); A(f"s_cselect_b32 s{sW1+1}, s45, s41"); A(f"s_and_b32 s{sW1+1}, s{sW1+1}, 0xffff")
    A(f"s_mov_b32 s{sW1+2}, 73728"); A(f"s_mov_b32 s{sW1+3}, 0x20000")
    for m in range(6):
        for i in range(3):
            A(f"s_add_u32 m0, s23, {m*12288+i*4096}")
            A(f"buffer_load_dwordx4 v{d+2}, s[{sW1}:{sW1+3}], s{70+i} offen lds")
        if m<5: A(f"v_add_u32 v{d+2}, s22, v{d+2}")
    srd(sO,50,50331648)
    A(f"s_mov_b32 s{sA}, {hx(AC)}"); A(f"s_mov_b32 s{sM96}, {hx(-1.0/96)}"); A(f"s_mov_b32 s{sVS}, {hx(1.0/(96*SC*SC))}")
    A(f"s_mov_b32 s{sSC}, {hx(SC)}"); A(f"s_mov_b32 s{sISC}, {hx(1.0/SC)}")
    A(f"v_mov_b32 v{vT3}, {hx(1e-5/(SC*SC))}")
    A(f"v_lshlrev_b32 v{vP16}, 4, v{t0}"); A(f"v_add_u32 v{vP16}, {PAR}, v{vP16}")
    A(f"v_lshlrev_b32 v{vFr}, 4, v{L}"); A(f"v_add_u32 v{vFr}, {FR}, v{vFr}")
    e=P+32
    A(f"v_bfe_u32 v{e}, v{L}, 4, 1")
    A(f"v_bfe_u32 v{e+1}, v{L}, 2, 2")
    A(f"v_and_b32 v{e+2}, 3, v{L}")
    A(f"v_lshlrev_b32 v{e+3}, 6, v{e+1}")
    A(f"v_lshl_add_u32 v{e+3}, v{e}, 5, v{e+3}")
    A(f"v_lshl_add_u32 v{vW1a}, v{e+2}, 3, v{e+3}")
    A(f"v_lshl_add_u32 v{vW1a}, v{t0}, 9, v{vW1a}")
    A(f"v_add_u32 v{vW1b}, 36864, v{vW1a}")
    A(f"v_and_b32 v{e+4}, 1, v{L}"); A(f"v_bfe_u32 v{e+5}, v{L}, 1, 1")
    A(f"v_lshl_add_u32 v{e+3}, v{e+4}, 4, v{e+3}"); A(f"v_lshl_add_u32 v{e+3}, v{e+5}, 3, v{e+3}")
    A(f"v_lshl_add_u32 v{vW2a}, v{t0}, 8, v{e+3}")
    A(f"v_add_u32 v{vW2a}, {W2B}, v{vW2a}"); A(f"v_add_u32 v{vW2b}, 36864, v{vW2a}")
    m=Z
    A(f"v_bfe_u32 v{m}, v{L}, 2, 1")
    A(f"v_and_b32 v{m+1}, 1, v{L}")
    A(f"v_mov_b32 v{m+2}, 0xffff"); A(f"v_mov_b32 v{m+3}, 0xffff0000")
    A(f"v_cmp_eq_u32 vcc, 1, v{m+1}"); A(f"v_cndmask_b32 v{m+2}, v{m+2}, v{m+3}, vcc")
    A(f"v_cmp_eq_u32 vcc, v{m}, v{t0}"); A(f"v_cndmask_b32 v{m+2}, 0, v{m+2}, vcc")
    A(f"v_bfe_u32 v{m+3}, v{L}, 4, 1"); A(f"v_bfe_u32 v{m+4}, v{L}, 3, 1"); A(f"v_bfe_u32 v{m+5}, v{L}, 1, 1")
    A(f"v_lshlrev_b32 v{m+3}, 2, v{m+3}"); A(f"v_lshl_add_u32 v{m+3}, v{m+4}, 1, v{m+3}"); A(f"v_add_u32 v{m+3}, v{m+3}, v{m+5}")
    for n in range(8):
        A(f"v_cmp_eq_u32 vcc, {n}, v{m+3}"); A(f"v_cndmask_b32 v{m+8+n}, 0, v{m+2}, vcc")
    for n in range(8): A(f"v_and_b32 v{IR+n}, 0x3f803f80, v{m+8+n}")
    A("s_waitcnt vmcnt(24)")
    A(f"s_cmp_ge_u32 s{sWAVE}, 6"); A("s_cbranch_scc1 L_p67")
    A(f"v_lshlrev_b32 v{q+1}, 16, v{q+1}"); A(f"v_mul_f32 v{q+1}, s{sSC}, v{q+1}")
    A(f"v_lshlrev_b32 v{q}, 2, v{vT2}"); A(f"v_add_u32 v{q}, {PAR+PB1}, v{q}"); A(f"ds_write_b32 v{q}, v{q+1}")
    A(f"s_bitcmp1_b32 s{sWAVE}, 0"); A("s_cbranch_scc0 L_kl0")
    for n in range(4): A(f"v_mov_b32 v{m+8+n}, v{m+12+n}")
    A("L_kl0:")
    for n in range(4): A(f"v_and_b32 v{q+8+n}, v{q+8+n}, v{m+8+n}")
    A(f"s_lshl_b32 s68, s{sWAVE}, 10"); A(f"v_add_u32 v{q}, s68, v{vFr}"); A(f"ds_write_b128 v{q}, {vr(q+8,4)}")
    A("s_branch L_pdone")
    A("L_p67:")
    A(f"v_cmp_gt_u32 vcc, 48, v{L}"); A("s_and_saveexec_b64 s[74:75], vcc")
    A(f"s_cmp_eq_u32 s{sWAVE}, 7"); A("s_cbranch_scc1 L_p7")
    A(f"v_lshlrev_b32 v{q+8}, 16, v{q+3}"); A(f"v_and_b32 v{q+9}, 0xffff0000, v{q+3}")
    A(f"v_lshlrev_b32 v{q+10}, 16, v{q+4}"); A(f"v_and_b32 v{q+11}, 0xffff0000, v{q+4}")
    A(f"v_mul_f32 v{q+10}, v{q+8}, v{q+10}"); A(f"v_mul_f32 v{q+11}, v{q+9}, v{q+11}")
    A(f"v_mul_f32 v{q+8}, s{sISC}, v{q+8}"); A(f"v_mul_f32 v{q+9}, s{sISC}, v{q+9}")
    A(f"v_lshrrev_b32 v{q}, 4, v{L}"); A(f"v_lshlrev_b32 v{q}, 7, v{q}")
    A(f"v_bfe_u32 v{q+1}, v{L}, 3, 1"); A(f"v_lshl_add_u32 v{q}, v{q+1}, 6, v{q}")
    A(f"v_bfe_u32 v{q+1}, v{L}, 1, 1"); A(f"v_lshl_add_u32 v{q}, v{q+1}, 5, v{q}")
    A(f"v_bfe_u32 v{q+1}, v{L}, 2, 1"); A(f"v_lshl_add_u32 v{q}, v{q+1}, 4, v{q}")
    A(f"v_and_b32 v{q+1}, 1, v{L}"); A(f"v_lshl_add_u32 v{q}, v{q+1}, 3, v{q}")
    A(f"v_add_u32 v{q}, {PAR}, v{q}")
    A(f"ds_write_b64 v{q}, {vr(q+8,2)} offset:{PG}"); A(f"ds_write_b64 v{q}, {vr(q+10,2)} offset:{PGB}")
    A("s_branch L_p67e")
    A("L_p7:")
    A(f"v_add_u32 v{q}, {PAR+PDW}, v{q+2}"); A(f"ds_write_b32 v{q}, v{q+5}")
    A("L_p67e:")
    A("s_mov_b64 exec, s[74:75]")
    A("L_pdone:")
    if 'b128' in FLAGS: A(f"v_lshlrev_b32 v{vT2}, 4, v{L}")
    A("s_waitcnt vmcnt(18) lgkmcnt(0)")
    A("s_barrier")
    return o
STAMP=False
nst=[0]
def stamp(k):
    if not STAMP: return []
    return [I(f"s_memtime s[{76+2*k}:{77+2*k}]"),I("s_memrealtime s[96:97]"),I("s_waitcnt lgkmcnt(0)"),I(f"s_mov_b32 s{77+2*k}, s96")]
def stamp_loop(tag):
    if not STAMP: return []
    o=[]
    for c in range(4,0,-1):
        o+=[I(f"s_cmp_lg_u32 s{sCNT}, {c}"),I(f"s_cbranch_scc1 L_st{tag}{c}"),I(f"s_memtime s[{76+2*(7-c)}:{77+2*(7-c)}]"),I("s_memrealtime s[96:97]"),I("s_waitcnt lgkmcnt(0)"),I(f"s_mov_b32 s{77+2*(7-c)}, s96"),I(f"L_st{tag}{c}:")]
    return o
def stamp_end():
    if not STAMP: return []
    o=[I("s_waitcnt vmcnt(0)"),I("s_memtime s[90:91]"),I("s_memrealtime s[92:93]"),I("s_load_dwordx2 s[36:37], s[0:1], 72"),I("s_waitcnt lgkmcnt(0)"),I("s_mov_b32 s91, s92"),
       I("s_lshl_b32 s38, s2, 3"),I(f"s_add_u32 s38, s38, s{sWAVE}"),I("s_lshl_b32 s38, s38, 7"),I("v_mov_b32 v14, s38")]
    for k in range(8):
        o+=[I(f"v_mov_b32 v12, s{76+2*k}"),I(f"v_mov_b32 v13, s{77+2*k}"),I(f"global_store_dwordx2 v14, v[12:13], s[36:37] offset:{8*k}"),I("s_nop 1")]
    o+=[I("v_mov_b32 v12, s92"),I("v_mov_b32 v13, s93"),I("global_store_dwordx2 v14, v[12:13], s[36:37] offset:112"),I("s_nop 1")]
    o+=[I("v_mov_b32 v12, s94"),I("v_mov_b32 v13, s95"),I("global_store_dwordx2 v14, v[12:13], s[36:37] offset:120")]
    return o
def build():
    out=[]
    pro=prologue()
    p,l,v=finalize(pro)
    if STAMP: p=p[:2]+[I("s_memrealtime s[94:95]")]+stamp(0)+p[2:]
    out+=p
    out+=stamp(1)
    out.append(I(f"s_mov_b32 s{sCNT}, 4"))
    out.append(I(f"s_cmp_ge_u32 s{sWAVE}, 4")); out.append(I("s_cbranch_scc1 L_roleB"))
    for role in (0,1):
        tag="AB"[role]; ROLE[0]=role
        if role==1: out.append(I("L_roleB:"))
        out.append(I(f"s_setprio {PRIO_S[role]}"))
        first=expand_prefetch(boundary(role,False),tag+"0",'cond')
        st=steps(role)
        p,l,v=finalize(first); out+=p
        out+=stamp(2)
        out.append(I("s_nop 7")); out.append(I(f"s_branch L_steps{tag}"))
        out.append(I(".p2align 6"))
        out.append(I(f"L_loop{tag}:"))
        body=[I("s_waitcnt vmcnt(0) lgkmcnt(0)")]+expand_prefetch(boundary(role,True),tag+"1",'cond')
        stp,l2,v2=finalize(st,l,v)
        bp,l3,v3=finalize(body,[],[],stp[-40:])
        assert len(l3)==len(l) or True
        out+=bp
        out.append(I(f"L_steps{tag}:"))
        stp,_,_=finalize([I("s_waitcnt lgkmcnt(0)")]+st,[],[],bp[-40:])
        out+=stp
        out+=stamp_loop(tag)
        out.append(I(f"s_mov_b32 s{sOFFO}, s{sOFFC}"))
        out.append(I(f"s_sub_u32 s{sCNT}, s{sCNT}, 1"));
        out.append(I(f"s_cmp_lg_u32 s{sCNT}, 0"))
        out.append(I(f"s_cbranch_scc1 L_loop{tag}_pre"))
        fe,_,_=finalize([I("s_waitcnt vmcnt(0) lgkmcnt(0)")]+final_epi(),[],[],stp[-40:])
        out+=fe
        out+=stamp_end()
        out.append(I("s_endpgm"))
        out.append(I(f"L_loop{tag}_pre:"))
        out.append(I(f"s_branch L_loop{tag}"))
    out.append(I("L_end:")); out.append(I("s_endpgm"))
    return out
HDR=open('standalone__modern_conv_block_convnext__vision.s.ref').read().split('\n')
def main(path):
    name="standalone__modern_conv_block_convnext__vision_kernel"
    hdr=[l for l in HDR if l.startswith(';') and not l.startswith('; @launch')]
    hdr=hdr[:hdr.index([l for l in hdr if 'Override launch' in l][0])+2]
    txt="\n".join(hdr)+f"\n; @launch grid=(256,1,1) block=(512,1,1) lds={LDSSZ}\n"
    txt+=f""".amdgcn_target "amdgcn-amd-amdhsa--gfx950"
.text
.globl {name}
.p2align 8
.type {name},@function
{name}:
"""
    for ins in build():
        t=ins.text
        txt+=(t if (ins.kind=='label' or t.startswith('.')) else "    "+t)+"\n"
    txt+=f""".section .rodata,"a"
.p2align 6
.amdhsa_kernel {name}
  .amdhsa_next_free_vgpr 256
  .amdhsa_next_free_sgpr 100
  .amdhsa_accum_offset 256
  .amdhsa_group_segment_fixed_size 0
  .amdhsa_kernarg_size 80
  .amdhsa_user_sgpr_count 2
  .amdhsa_user_sgpr_kernarg_segment_ptr 1
  .amdhsa_system_sgpr_workgroup_id_x 1
.end_amdhsa_kernel
"""
    open(path,'w').write(txt)
if __name__=='__main__':
    for a in sys.argv[2:]:
        for f in a.split(','):
            if f=='stamp': STAMP=True
            else: FLAGS.add(f)
    main(sys.argv[1] if len(sys.argv)>1 else 'standalone__modern_conv_block_convnext__vision.s')
```

```python
import sys, struct, math, argparse
from asmlib import *
def f2u(x): return struct.unpack('<I',struct.pack('<f',x))[0]
def hx(x): return f"0x{f2u(x):08x}"
k1=-2.0*math.sqrt(2.0/math.pi)*math.log2(math.e); k2=k1*0.044715
SC=(-k2)**(1.0/3.0); AC=k1/SC
vT=0; vW1a=1; vW1b=2; vW2a=3; vW2b=4; vP16=5; vFr=6; vG=7
vRHO=8; vT1=9; vT2=10; vT3=11
IR=12; XB=20; H=36; XC=60; XN=84; ACC=108; P=156; Z=204; G=228; AF=232
sX=4; sO=8; sW1=12; sW2=16; sS=20
sWAVE=24; sCNT=26; sOFFN=27; sOFFO=28; sOFFC=29; sA=30; sM96=31; sVS=32; sEPS=33; sSC=34; sISC=35
W2B=73728; PAR=147456; PB1=0; PG=1536; PGB=1920; PDW=2304; FR=PAR+2560; LDSSZ=FR+6144
def vr(b,n): return f"v[{b}:{b+n-1}]"
def MF(d,a,b,c=None):
    cs = vr(d,16) if c is None else (c if isinstance(c,str) else vr(c,16))
    return I(f"v_mfma_f32_32x32x16_bf16 {vr(d,16)}, {vr(a,4)}, {vr(b,4)}, {cs}")
def Preg(jj): return P+16*((jj//2)%3)+8*(jj%2)
def Pbuf(t): return P+16*(t%3)
def Zreg(jj): return Z+8*(jj%3)
def frag_w1(slot,t,ks):
    u=t*6+ks; base=vW1a if u<36 else vW1b; off=(u%36)*1024
    d=AF+4*slot
    if 'b128' in FLAGS: return [I(f"ds_read_b128 {vr(d,4)}, v{vT2} offset:{(u*1024)%65536}")]
    return [I(f"ds_read_b64_tr_b16 {vr(d,2)}, v{base} offset:{off}"), I(f"ds_read_b64_tr_b16 {vr(d+2,2)}, v{base} offset:{off+256}")]
def frag_w2(slot,jj,rt):
    u=jj*3+rt; base=vW2a if u<36 else vW2b; off=(u%36)*1024
    d=AF+4*slot
    if 'b128' in FLAGS: return [I(f"ds_read_b128 {vr(d,4)}, v{vT2} offset:{(u*1024+8192)%65536}")]
    return [I(f"ds_read_b64_tr_b16 {vr(d,2)}, v{base} offset:{off}"), I(f"ds_read_b64_tr_b16 {vr(d+2,2)}, v{base} offset:{off+512}")]
def bias_load(t):
    return [I(f"ds_read_b128 {vr(Pbuf(t)+4*m,4)}, v{vP16} offset:{PB1+128*t+32*m}") for m in range(4)]
NH=24
def interleave_x(T, M):
    if not M: return list(T)
    cost=[2 if x.trans else 1 for x in T]; tot=sum(cost)
    out=[]; n=len(M); k=0; acc=0
    for x,c in zip(T,cost):
        while k<n and acc>=k*tot/n-1e-9:
            out.append(M[k]); k+=1
        out.append(x); acc+=c
    out+=M[k:]
    return out
PRIO_S={0:0,1:2}
FLAGS=set()
def step_parts(j, role):
    Sa=[];Sb=[];Sc=[];Xe=[];Xr=[];Xc=[]
    if 0<=j+1<NH:
        p=Preg(j+1); z=Zreg(j+1)
        Sa+= [I(f"v_fma_f32 v{z+k}, -v{p+k}, v{p+k}, s{sA}") for k in range(8)]
        Sa+= [I(f"v_mul_f32 v{z+k}, v{z+k}, v{p+k}") for k in range(8)]
        Xe+= [I(f"v_exp_f32 v{z+k}, v{z+k}") for k in range(8)]
    if 0<=j<NH:
        z=Zreg(j)
        Sb+= [I(f"v_add_f32 v{z+k}, 1.0, v{z+k}") for k in range(8)]
        Xr+= [I(f"v_rcp_f32 v{z+k}, v{z+k}") for k in range(8)]
    if 0<=j-1<NH:
        z=Zreg(j-1); p=Preg(j-1)
        Sc+= [I(f"v_mul_f32 v{z+k}, v{z+k}, v{p+k}") for k in range(8)]
        Xc+= [I(f"v_cvt_pk_bf16_f32 v{G+k}, v{z+2*k}, v{z+2*k+1}") for k in range(4)]
    S=Sc+Sb+Sa
    def m1(jj):
        if jj+3<0: return None
        t=(jj+3)//2; part=(jj+3)%2
        return (t,part) if 0<=t<12 else None
    def m2(jj):
        q=jj-1
        return q if 0<=q<NH else None
    M=[]
    c1=m1(j); c2=m2(j)
    if c1:
        t,part=c1
        M+=[MF(Pbuf(t),AF+4*k,H+4*(3*part+k)) for k in range(3)]
    if c2 is not None:
        M+=[MF(ACC+16*k,AF+4*(3+k),G,"0" if c2==0 else None) for k in range(3)]
    if c1: X=interleave_x(Xc+Xr+Xe,M)
    else: X=Xc+interleave_x(Xr+Xe,M)
    jl=j+1 if role==0 else j
    L=[]
    n1=m1(jl); n2=m2(jl)
    if n1:
        t,part=n1
        for k in range(3): L+=frag_w1(k,t,3*part+k)
    if n2 is not None:
        for k in range(3): L+=frag_w2(3+k,n2,k)
    if (j+4)%2==0 and 0<=(j+4)//2<12:
        L+=bias_load((j+4)//2)
    if 'noL' in FLAGS and 2<=j<=20: L=[]
    if 'noM' in FLAGS and 2<=j<=20: X=[x for x in X if x.kind!='mfma']
    if 'noM2' in FLAGS and 2<=j<=20: X=[x for x in X if not (x.kind=='mfma' and x.defs[0][1]>=ACC and x.defs[0][1]<ACC+48)]
    if 'noT' in FLAGS and 2<=j<=20: X=[x for x in X if not x.trans]
    if 'noS' in FLAGS and 2<=j<=20: S=[]
    return S,X,L
VSTEPS=[-1,0,2,3,5,6,8,9,11,12,14,15]
def st_x(n):
    return I(f"buffer_store_dwordx4 {vr(XC+4*n,4)}, v{vG}, s[{sO}:{sO+3}], s{sOFFO} offen offset:{32*n}")
def ld_x(k):
    return I(f"buffer_load_dwordx4 {vr(XN+4*k,4)}, v{vG}, s[{sX}:{sX+3}], s{sOFFN} offen offset:{32*k}")
def vm_sched(j,role):
    seq=[('s',0),('s',1),('l',0),('l',1),('s',2),('s',3),('l',2),('l',3),('s',4),('s',5),('l',4),('l',5)]
    mv=[];vm=[]
    pos=[v+role for v in VSTEPS]
    if j in pos:
        n=pos.index(j); k,a=seq[n]
        vm.append(st_x(a) if k=='s' else ld_x(a))
        if k=='l' and a%2==0:
            rt=a//2
            mv=[I(f"v_mov_b32 v{XC+8*rt+r}, v{XN+8*rt+r}") for r in range(8)]
    return mv,vm
def emit_step(j,role):
    S,X,L=step_parts(j,role)
    mv,vm=vm_sched(j,role)
    S=mv+S; L=L+vm
    P1=[I("s_setprio 1")]; P0=[I(f"s_setprio {PRIO_S[role]}")]
    if role==0:
        W=[I("s_waitcnt lgkmcnt(0)")] if any(x.kind=='mfma' for x in X) else []
        return S+(P1+W+X+P0 if X else [])+L
    else:
        X2=[];seen=0
        nb=len([x for x in L if x.op=='ds_read_b128'])
        ntr=len(L)-nb
        mf=[x for x in X if x.kind=='mfma']
        has1=any(x.defs[0][1]>=P for x in mf); has2=any(x.defs[0][1]<P for x in mf)
        first2=None
        for x in X:
            if x.kind=='mfma' and x.defs[0][1]<P and first2 is None and has1:
                first2=x; X2.append(I(f"s_waitcnt lgkmcnt({nb})"))
            X2.append(x)
        W=[]
        if mf: W=[I(f"s_waitcnt lgkmcnt({min(15,(ntr-6+nb) if (has1 and has2) else nb)})")]
        return S+L+(P1+W+X2+P0 if X else [])
def epi_res(rt):
    return [MF(XB,IR,XC+8*rt),MF(XB,IR+4,XC+8*rt+4)]
def epi_ld_gb(rt): return [I(f"ds_read_b128 {vr(XB+4*m,4)}, v{vP16} offset:{PGB+128*rt+32*m}") for m in range(4)]
def epi_ld_g(rt,dst): return [I(f"ds_read_b128 {vr(dst+4*m,4)}, v{vP16} offset:{PG+128*rt+32*m}") for m in range(4)]
def epi_fma(rt,g): return [I(f"v_fma_f32 v{ACC+16*rt+r}, v{ACC+16*rt+r}, v{g+r}, v{XB+r}") for r in range(16)]
def epi_cvt(rt,dst=None):
    d=ACC+16*rt if dst is None else dst
    return [I(f"v_cvt_pk_bf16_f32 v{d+q}, v{ACC+16*rt+2*q}, v{ACC+16*rt+2*q+1}") for q in range(8)]
def dma(m):
    o=[]
    for i in range(3):
        o.append(I(f"s_add_u32 m0, s23, {m*12288+i*4096}"))
        o.append(I(f"buffer_load_dwordx4 v{XB}, s[{sW1}:{sW1+3}], s{70+i} offen lds"))
    if m<5: o.append(I(f"v_add_u32 v{XB}, s22, v{XB}"))
    return o
def epi_st(rt): return [I(f"buffer_store_dwordx4 {vr(ACC+16*rt+4*kl,4)}, v{vG}, s[{sO}:{sO+3}], s{sOFFO} offen offset:{(2*rt+kl)*32}") for kl in range(2)]
ROLE=[0]
def X_(l): return [I("s_setprio 1")]+l+[I(f"s_setprio {PRIO_S[ROLE[0]]}")]
def boundary(role, epi):
    o=[]
    DM=Z
    GT=H
    o+=[I(f"ds_read_b128 {vr(AF+4*k,4)}, v{vP16} offset:{PDW+32*k}") for k in range(6)]
    if epi: o+=epi_ld_gb(0)
    else: o+=dma(1)+dma(2)
    o+=[I(f"s_mov_b32 s{sOFFC}, s{sOFFN}"),I(f"s_add_u32 s{sOFFN}, s{sOFFN}, {2048*6144}"),
        I(f"s_cmp_eq_u32 s{sCNT}, 1"),I(f"s_cselect_b32 s{sX+2}, 0, 50331648")]
    for k in range(6):
        o.append(MF(DM,AF+4*k,XN+4*k,"0" if k==0 else None))
        o.append(I(f"ds_read_b128 {vr(AF+4*k,4)}, v{vFr} offset:{1024*k}"))
    if epi:
        o+=epi_res(0); o+=epi_ld_g(0,GT)
    o+=[I(f"v_mul_f32 v{DM+r}, s{sM96}, v{DM+r}") for r in range(16)]
    for rt in range(3):
        o.append(MF(P+16*rt,AF+8*rt,XN+8*rt,DM))
    for rt in range(3):
        o.append(MF(P+16*rt,AF+8*rt+4,XN+8*rt+4))
    if epi:
        o+=epi_fma(0,GT)
        o+=epi_ld_gb(1); o+=epi_ld_g(1,GT)
        o+=X_(epi_cvt(0,XC))
        o+=epi_res(1)
    if not epi: o+=[I("s_waitcnt vmcnt(6)")]+(stamp(5) if 'pst' in FLAGS else [])+[I("s_barrier")]
    for k in range(3): o+=frag_w1(k,0,k)
    ss=[]
    for n in range(48):
        c=P+n; a=G+(n%4)
        if n<4: ss.append(I(f"v_mul_f32 v{a}, v{c}, v{c}"))
        else: ss.append(I(f"v_fma_f32 v{a}, v{c}, v{c}, v{a}"))
    o+=ss
    o+=[I(f"v_add_f32 v{G}, v{G}, v{G+1}"),I(f"v_add_f32 v{G+2}, v{G+2}, v{G+3}"),I(f"v_add_f32 v{G}, v{G}, v{G+2}"),
        I(f"v_mov_b32 v{vT1}, v{G}"),
        I(f"v_permlane32_swap_b32 v{vT1}, v{G}"),
        I(f"v_add_f32 v{G}, v{G}, v{vT1}"),
        I(f"v_fma_f32 v{G}, v{G}, s{sVS}, v{vT3}"),
        I(f"v_rsq_f32 v{vRHO}, v{G}")]
    if epi:
        o+=epi_fma(1,GT)
        o+=epi_ld_gb(2); o+=epi_ld_g(2,Z)
    for rt in range(3):
        o+=[I(f"v_mul_f32 v{P+16*rt+r}, v{vRHO}, v{P+16*rt+r}") for r in range(16)]
        if rt==0 and epi:
            o+=epi_res(2)
        o+=X_([I(f"v_cvt_pk_bf16_f32 v{H+8*rt+q}, v{P+16*rt+2*q}, v{P+16*rt+2*q+1}") for q in range(8)])
        if rt==0: o+=bias_load(0)
    for k in range(3):
        o.append(MF(Pbuf(0),AF+4*k,H+4*k)); o+=frag_w1(k,0,3+k)
    if epi:
        o+=X_(epi_cvt(1,XC+8))
    else: o+=dma(3)+dma(4)+dma(5)
    for k in range(3):
        o.append(MF(Pbuf(0),AF+4*k,H+4*(3+k))); o+=frag_w1(k,1,k)
    o+=bias_load(1)
    if epi:
        o+=epi_fma(2,Z); o+=X_(epi_cvt(2,XC+16))
    return o
def final_epi():
    o=[]
    for rt in range(3):
        o+=epi_ld_gb(rt); o+=epi_ld_g(rt,H); o+=epi_res(rt); o+=epi_fma(rt,H); o+=epi_cvt(rt); o+=epi_st(rt)
    return o
def xloads(dst): return [I(f"buffer_load_dwordx4 {vr(dst+4*k,4)}, v{vG}, s[{sX}:{sX+3}], s{sOFFN} offen offset:{32*k}") for k in range(6)]
def steps(role):
    o=[]
    last=24
    for j in range(-1,last+1):
        if j==0: o+=[I(f"s_waitcnt vmcnt({10-role})"),I("s_barrier")]
        if j==8: o+=[I("s_waitcnt vmcnt(6)"),I("s_barrier")]
        o+=emit_step(j,role)
    return o
def finalize(prog, lds=None, vm=None, hist=None):
    p,l,v=insert_waits(prog,lds,vm)
    p=insert_nops(p,hist)
    return p,l,v
def expand_prefetch(prog, tag, do):
    out=[]
    for ins in prog:
        if ins.op=='PREFETCH':
            if do=='always': out+=xloads(XN)
            else:
                out+= [I(f"s_mov_b32 s{sOFFC}, s{sOFFN}"),I(f"s_cmp_eq_u32 s{sCNT}, 1"),I(f"s_cbranch_scc1 L_nopf_{tag}"),I(f"s_add_u32 s{sOFFN}, s{sOFFN}, {2048*6144}")]+xloads(XN)+[I(f"L_nopf_{tag}:")]
        else: out.append(ins)
    return out
def prologue():
    o=[]
    A=lambda t:o.append(I(t))
    A("s_cmp_ge_u32 s2, 256"); A("s_cbranch_scc1 L_end")
    A("s_load_dwordx16 s[36:51], s[0:1], 0")
    A(f"v_lshrrev_b32 v{vT1}, 6, v0")
    A(f"v_mov_b32 v{vT2}, v0")
    A(f"v_and_b32 v{vT}, 63, v0")
    A(f"v_readfirstlane_b32 s{sWAVE}, v{vT1}")
    L=vT; t0=P
    A(f"v_lshrrev_b32 v{t0}, 5, v{L}")
    A(f"v_and_b32 v{t0+1}, 31, v{L}")
    A(f"v_mul_u32_u24 v{vG}, 192, v{t0+1}"); A(f"v_lshl_add_u32 v{vG}, v{t0}, 4, v{vG}")
    q=P+8
    A(f"v_lshlrev_b32 v{q}, 1, v{vT2}")
    A(f"v_lshlrev_b32 v{q+2}, 2, v{L}")
    A(f"v_lshlrev_b32 v{q+6}, 4, v{t0}")
    A(f"s_lshl_b32 s{sOFFN}, s2, 3"); A(f"s_add_u32 s{sOFFN}, s{sOFFN}, s{sWAVE}"); A(f"s_mul_i32 s{sOFFN}, s{sOFFN}, 6144")
    A(f"s_lshl_b32 s68, s{sWAVE}, 5"); A("s_min_u32 s68, s68, 160")
    A(f"s_and_b32 s16, s{sWAVE}, 3")
    A(f"s_cmp_ge_u32 s{sWAVE}, 4")
    A("s_cselect_b32 s17, 86, 43")
    A("s_cselect_b32 s18, 3, 6")
    A("s_cselect_b32 s19, 3072, 64")
    A("s_cselect_b32 s20, 64, 12288")
    A("s_cselect_b32 s21, 3, 12")
    A("s_cselect_b32 s22, 0x60, 1")
    A(f"s_cselect_b32 s23, {W2B}, 0")
    A("s_lshl_b32 s21, s21, 6"); A("s_lshl_b32 s22, s22, 7")
    A("s_lshl_b32 s73, s16, 10"); A("s_add_u32 s23, s23, s73")
    d=P+24
    A(f"v_lshrrev_b32 v{d}, 2, v{L}")
    A(f"v_and_b32 v{d+1}, 3, v{L}")
    A(f"v_mul_lo_u32 v{XB}, v{d}, s21"); A(f"v_lshl_add_u32 v{XB}, v{d+1}, 4, v{XB}")
    for i in range(3):
        A(f"s_add_u32 s73, s16, {4*i}")
        A("s_mul_i32 s74, s73, s17"); A("s_lshr_b32 s74, s74, 8")
        A("s_mul_i32 s75, s74, s18"); A("s_sub_u32 s75, s73, s75")
        A("s_mul_i32 s74, s74, s19"); A("s_mul_i32 s75, s75, s20"); A(f"s_add_u32 s{70+i}, s74, s75")
    A("s_waitcnt lgkmcnt(0)")
    if 'pst' in FLAGS: o.extend(stamp(1))
    def srd(d,p,n):
        A(f"s_mov_b32 s{d}, s{p}"); A(f"s_and_b32 s{d+1}, s{p+1}, 0xffff"); A(f"s_mov_b32 s{d+2}, {n}"); A(f"s_mov_b32 s{d+3}, 0x20000")
    srd(56,42,768); srd(64,48,192); srd(60,46,192); srd(52,38,192)
    A(f"buffer_load_ushort v{q+1}, v{q}, s[56:59], 0 offen")
    A(f"buffer_load_dword v{q+3}, v{q+2}, s[64:67], 0 offen")
    A(f"buffer_load_dword v{q+4}, v{q+2}, s[60:63], 0 offen")
    A(f"buffer_load_dword v{q+5}, v{q+2}, s[52:55], 0 offen")
    A(f"buffer_load_dwordx4 {vr(q+8,4)}, v{q+6}, s[52:55], s68 offen")
    srd(sX,36,50331648)
    o.extend(xloads(XN))
    A(f"s_cmp_ge_u32 s{sWAVE}, 4")
    A(f"s_cselect_b32 s{sW1}, s44, s40"); A(f"s_cselect_b32 s{sW1+1}, s45, s41"); A(f"s_and_b32 s{sW1+1}, s{sW1+1}, 0xffff")
    A(f"s_mov_b32 s{sW1+2}, 73728"); A(f"s_mov_b32 s{sW1+3}, 0x20000")
    if 'nob0' not in FLAGS: A('s_barrier')
    o.extend(dma(0))
    if 'pst' in FLAGS: o.extend(stamp(2))
    srd(sO,50,0)
    A(f"s_mov_b32 s{sA}, {hx(AC)}"); A(f"s_mov_b32 s{sM96}, {hx(-1.0/96)}"); A(f"s_mov_b32 s{sVS}, {hx(1.0/(96*SC*SC))}")
    A(f"s_mov_b32 s{sSC}, {hx(SC)}"); A(f"s_mov_b32 s{sISC}, {hx(1.0/SC)}")
    A(f"v_mov_b32 v{vT3}, {hx(1e-5/(SC*SC))}")
    A(f"v_lshlrev_b32 v{vP16}, 4, v{t0}"); A(f"v_add_u32 v{vP16}, {PAR}, v{vP16}")
    A(f"v_lshlrev_b32 v{vFr}, 4, v{L}"); A(f"v_add_u32 v{vFr}, {FR}, v{vFr}")
    e=P+32
    A(f"v_bfe_u32 v{e}, v{L}, 4, 1")
    A(f"v_bfe_u32 v{e+1}, v{L}, 2, 2")
    A(f"v_and_b32 v{e+2}, 3, v{L}")
    A(f"v_lshlrev_b32 v{e+3}, 6, v{e+1}")
    A(f"v_lshl_add_u32 v{e+3}, v{e}, 5, v{e+3}")
    A(f"v_lshl_add_u32 v{vW1a}, v{e+2}, 3, v{e+3}")
    A(f"v_lshl_add_u32 v{vW1a}, v{t0}, 9, v{vW1a}")
    A(f"v_add_u32 v{vW1b}, 36864, v{vW1a}")
    A(f"v_and_b32 v{e+4}, 1, v{L}"); A(f"v_bfe_u32 v{e+5}, v{L}, 1, 1")
    A(f"v_lshl_add_u32 v{e+3}, v{e+4}, 4, v{e+3}"); A(f"v_lshl_add_u32 v{e+3}, v{e+5}, 3, v{e+3}")
    A(f"v_lshl_add_u32 v{vW2a}, v{t0}, 8, v{e+3}")
    A(f"v_add_u32 v{vW2a}, {W2B}, v{vW2a}"); A(f"v_add_u32 v{vW2b}, 36864, v{vW2a}")
    m=Z
    A(f"v_bfe_u32 v{m}, v{L}, 2, 1")
    A(f"v_and_b32 v{m+1}, 1, v{L}")
    A(f"v_mov_b32 v{m+2}, 0xffff"); A(f"v_mov_b32 v{m+3}, 0xffff0000")
    A(f"v_cmp_eq_u32 vcc, 1, v{m+1}"); A(f"v_cndmask_b32 v{m+2}, v{m+2}, v{m+3}, vcc")
    A(f"v_cmp_eq_u32 vcc, v{m}, v{t0}"); A(f"v_cndmask_b32 v{m+2}, 0, v{m+2}, vcc")
    A(f"v_bfe_u32 v{m+3}, v{L}, 4, 1"); A(f"v_bfe_u32 v{m+4}, v{L}, 3, 1"); A(f"v_bfe_u32 v{m+5}, v{L}, 1, 1")
    A(f"v_lshlrev_b32 v{m+3}, 2, v{m+3}"); A(f"v_lshl_add_u32 v{m+3}, v{m+4}, 1, v{m+3}"); A(f"v_add_u32 v{m+3}, v{m+3}, v{m+5}")
    for n in range(8):
        A(f"v_cmp_eq_u32 vcc, {n}, v{m+3}"); A(f"v_cndmask_b32 v{m+8+n}, 0, v{m+2}, vcc")
    for n in range(8): A(f"v_and_b32 v{IR+n}, 0x3f803f80, v{m+8+n}")
    A("s_waitcnt vmcnt(9)")
    if 'pst' in FLAGS: o.extend(stamp(3))
    A(f"s_cmp_ge_u32 s{sWAVE}, 6"); A("s_cbranch_scc1 L_p67")
    A(f"v_lshlrev_b32 v{q+1}, 16, v{q+1}"); A(f"v_mul_f32 v{q+1}, s{sSC}, v{q+1}")
    A(f"v_lshlrev_b32 v{q}, 2, v{vT2}"); A(f"v_add_u32 v{q}, {PAR+PB1}, v{q}"); A(f"ds_write_b32 v{q}, v{q+1}")
    A(f"s_bitcmp1_b32 s{sWAVE}, 0"); A("s_cbranch_scc0 L_kl0")
    for n in range(4): A(f"v_mov_b32 v{m+8+n}, v{m+12+n}")
    A("L_kl0:")
    for n in range(4): A(f"v_and_b32 v{q+8+n}, v{q+8+n}, v{m+8+n}")
    A(f"s_lshl_b32 s68, s{sWAVE}, 10"); A(f"v_add_u32 v{q}, s68, v{vFr}"); A(f"ds_write_b128 v{q}, {vr(q+8,4)}")
    A("s_branch L_pdone")
    A("L_p67:")
    A(f"v_cmp_gt_u32 vcc, 48, v{L}"); A("s_and_saveexec_b64 s[74:75], vcc")
    A(f"s_cmp_eq_u32 s{sWAVE}, 7"); A("s_cbranch_scc1 L_p7")
    A(f"v_lshlrev_b32 v{q+8}, 16, v{q+3}"); A(f"v_and_b32 v{q+9}, 0xffff0000, v{q+3}")
    A(f"v_lshlrev_b32 v{q+10}, 16, v{q+4}"); A(f"v_and_b32 v{q+11}, 0xffff0000, v{q+4}")
    A(f"v_mul_f32 v{q+10}, v{q+8}, v{q+10}"); A(f"v_mul_f32 v{q+11}, v{q+9}, v{q+11}")
    A(f"v_mul_f32 v{q+8}, s{sISC}, v{q+8}"); A(f"v_mul_f32 v{q+9}, s{sISC}, v{q+9}")
    A(f"v_lshrrev_b32 v{q}, 4, v{L}"); A(f"v_lshlrev_b32 v{q}, 7, v{q}")
    A(f"v_bfe_u32 v{q+1}, v{L}, 3, 1"); A(f"v_lshl_add_u32 v{q}, v{q+1}, 6, v{q}")
    A(f"v_bfe_u32 v{q+1}, v{L}, 1, 1"); A(f"v_lshl_add_u32 v{q}, v{q+1}, 5, v{q}")
    A(f"v_bfe_u32 v{q+1}, v{L}, 2, 1"); A(f"v_lshl_add_u32 v{q}, v{q+1}, 4, v{q}")
    A(f"v_and_b32 v{q+1}, 1, v{L}"); A(f"v_lshl_add_u32 v{q}, v{q+1}, 3, v{q}")
    A(f"v_add_u32 v{q}, {PAR}, v{q}")
    A(f"ds_write_b64 v{q}, {vr(q+8,2)} offset:{PG}"); A(f"ds_write_b64 v{q}, {vr(q+10,2)} offset:{PGB}")
    A("s_branch L_p67e")
    A("L_p7:")
    A(f"v_add_u32 v{q}, {PAR+PDW}, v{q+2}"); A(f"ds_write_b32 v{q}, v{q+5}")
    A("L_p67e:")
    A("s_mov_b64 exec, s[74:75]")
    A("L_pdone:")
    if 'b128' in FLAGS: A(f"v_lshlrev_b32 v{vT2}, 4, v{L}")
    A("s_waitcnt vmcnt(3) lgkmcnt(0)")
    if 'pst' in FLAGS: o.extend(stamp(4))
    A("s_barrier")
    return o
STAMP=False
nst=[0]
def stamp(k):
    if not STAMP: return []
    return [I(f"s_memtime s[{76+2*k}:{77+2*k}]"),I("s_memrealtime s[96:97]"),I("s_waitcnt lgkmcnt(0)"),I(f"s_mov_b32 s{77+2*k}, s96")]
def stamp_loop(tag):
    if not STAMP or 'pst' in FLAGS: return []
    o=[]
    for c in range(4,0,-1):
        o+=[I(f"s_cmp_lg_u32 s{sCNT}, {c}"),I(f"s_cbranch_scc1 L_st{tag}{c}"),I(f"s_memtime s[{76+2*(7-c)}:{77+2*(7-c)}]"),I("s_memrealtime s[96:97]"),I("s_waitcnt lgkmcnt(0)"),I(f"s_mov_b32 s{77+2*(7-c)}, s96"),I(f"L_st{tag}{c}:")]
    return o
def stamp_end():
    if not STAMP: return []
    o=[I("s_waitcnt vmcnt(0)"),I("s_memtime s[90:91]"),I("s_memrealtime s[92:93]"),I("s_load_dwordx2 s[36:37], s[0:1], 72"),I("s_waitcnt lgkmcnt(0)"),I("s_mov_b32 s91, s92"),
       I("s_lshl_b32 s38, s2, 3"),I(f"s_add_u32 s38, s38, s{sWAVE}"),I("s_lshl_b32 s38, s38, 7"),I("v_mov_b32 v14, s38")]
    for k in range(8):
        o+=[I(f"v_mov_b32 v12, s{76+2*k}"),I(f"v_mov_b32 v13, s{77+2*k}"),I(f"global_store_dwordx2 v14, v[12:13], s[36:37] offset:{8*k}"),I("s_nop 1")]
    o+=[I("v_mov_b32 v12, s92"),I("v_mov_b32 v13, s93"),I("global_store_dwordx2 v14, v[12:13], s[36:37] offset:112"),I("s_nop 1")]
    o+=[I("v_mov_b32 v12, s94"),I("v_mov_b32 v13, s95"),I("global_store_dwordx2 v14, v[12:13], s[36:37] offset:120")]
    return o
def build():
    out=[]
    pro=prologue()
    p,l,v=finalize(pro)
    if STAMP: p=p[:2]+[I("s_memrealtime s[94:95]")]+stamp(0)+p[2:]
    out+=p
    if 'pst' not in FLAGS: out+=stamp(1)
    out.append(I(f"s_mov_b32 s{sCNT}, 4"))
    out.append(I(f"s_cmp_ge_u32 s{sWAVE}, 4")); out.append(I("s_cbranch_scc1 L_roleB"))
    for role in (0,1):
        tag="AB"[role]; ROLE[0]=role
        if role==1: out.append(I("L_roleB:"))
        out.append(I(f"s_setprio {PRIO_S[role]}"))
        first=expand_prefetch(boundary(role,False),tag+"0",'cond')
        st=steps(role)
        p,l,v=finalize(first); out+=p
        out+=stamp(6 if 'pst' in FLAGS else 2)
        out.append(I("s_nop 7")); out.append(I(f"s_branch L_steps{tag}"))
        out.append(I(".p2align 6"))
        out.append(I(f"L_loop{tag}:"))
        body=[I("s_waitcnt vmcnt(0) lgkmcnt(0)")]+expand_prefetch(boundary(role,True),tag+"1",'cond')
        stp,l2,v2=finalize(st,l,v)
        bp,l3,v3=finalize(body,[],[],stp[-40:])
        assert len(l3)==len(l) or True
        out+=bp
        out.append(I(f"L_steps{tag}:"))
        stp,_,_=finalize([I("s_waitcnt lgkmcnt(0)")]+st,[],[],bp[-40:])
        out+=stp
        out+=stamp_loop(tag)
        out.append(I(f"s_mov_b32 s{sOFFO}, s{sOFFC}")); out.append(I(f"s_mov_b32 s{sO+2}, 50331648"))
        out.append(I(f"s_sub_u32 s{sCNT}, s{sCNT}, 1"));
        out.append(I(f"s_cmp_lg_u32 s{sCNT}, 0"))
        out.append(I(f"s_cbranch_scc1 L_loop{tag}_pre"))
        fe,_,_=finalize([I("s_waitcnt vmcnt(0) lgkmcnt(0)")]+final_epi(),[],[],stp[-40:])
        out+=fe
        out+=stamp_end()
        out.append(I("s_endpgm"))
        out.append(I(f"L_loop{tag}_pre:"))
        out.append(I(f"s_branch L_loop{tag}"))
    out.append(I("L_end:")); out.append(I("s_endpgm"))
    return out
HDR=open('standalone__modern_conv_block_convnext__vision.s.ref').read().split('\n')
def main(path):
    name="standalone__modern_conv_block_convnext__vision_kernel"
    hdr=[l for l in HDR if l.startswith(';') and not l.startswith('; @launch')]
    hdr=hdr[:hdr.index([l for l in hdr if 'Override launch' in l][0])+2]
    txt="\n".join(hdr)+f"\n; @launch grid=(256,1,1) block=(512,1,1) lds={LDSSZ}\n"
    txt+=f""".amdgcn_target "amdgcn-amd-amdhsa--gfx950"
.text
.globl {name}
.p2align 8
.type {name},@function
{name}:
"""
    for ins in build():
        t=ins.text
        txt+=(t if (ins.kind=='label' or t.startswith('.')) else "    "+t)+"\n"
    txt+=f""".section .rodata,"a"
.p2align 6
.amdhsa_kernel {name}
  .amdhsa_next_free_vgpr 256
  .amdhsa_next_free_sgpr 100
  .amdhsa_accum_offset 256
  .amdhsa_group_segment_fixed_size 0
  .amdhsa_kernarg_size 80
  .amdhsa_user_sgpr_count 2
  .amdhsa_user_sgpr_kernarg_segment_ptr 1
  .amdhsa_system_sgpr_workgroup_id_x 1
.end_amdhsa_kernel
"""
    open(path,'w').write(txt)
if __name__=='__main__':
    for a in sys.argv[2:]:
        for f in a.split(','):
            if f=='stamp': STAMP=True
            else: FLAGS.add(f)
    main(sys.argv[1] if len(sys.argv)>1 else 'standalone__modern_conv_block_convnext__vision.s')
```

```python
import sys, struct, math, argparse
from asmlib import *
def f2u(x): return struct.unpack('<I',struct.pack('<f',x))[0]
def hx(x): return f"0x{f2u(x):08x}"
k1=-2.0*math.sqrt(2.0/math.pi)*math.log2(math.e); k2=k1*0.044715
SC=(-k2)**(1.0/3.0); AC=k1/SC
vT=0; vW1a=1; vW1b=2; vW2a=3; vW2b=4; vP16=5; vFr=6; vG=7
vRHO=8; vT1=9; vT2=10; vT3=11
IR=12; XB=20; H=36; XC=60; XN=84; ACC=108; P=156; Z=204; G=228; AF=232
sX=4; sO=8; sW1=12; sW2=16; sS=20
sWAVE=24; sCNT=26; sOFFN=27; sOFFO=28; sOFFC=29; sA=30; sM96=31; sVS=32; sEPS=33; sSC=34; sISC=35
W2B=73728; PAR=147456; PB1=0; PG=1536; PGB=1920; PDW=2304; FR=PAR+2560; LDSSZ=FR+6144
def vr(b,n): return f"v[{b}:{b+n-1}]"
def MF(d,a,b,c=None):
    cs = vr(d,16) if c is None else (c if isinstance(c,str) else vr(c,16))
    return I(f"v_mfma_f32_32x32x16_bf16 {vr(d,16)}, {vr(a,4)}, {vr(b,4)}, {cs}")
def Preg(jj): return P+16*((jj//2)%3)+8*(jj%2)
def Pbuf(t): return P+16*(t%3)
def Zreg(jj): return Z+8*(jj%3)
def frag_w1(slot,t,ks):
    u=t*6+ks; base=vW1a if u<36 else vW1b; off=(u%36)*1024
    d=AF+4*slot
    if 'b128' in FLAGS: return [I(f"ds_read_b128 {vr(d,4)}, v{vT2} offset:{(u*1024)%65536}")]
    return [I(f"ds_read_b64_tr_b16 {vr(d,2)}, v{base} offset:{off}"), I(f"ds_read_b64_tr_b16 {vr(d+2,2)}, v{base} offset:{off+256}")]
def frag_w2(slot,jj,rt):
    u=jj*3+rt; base=vW2a if u<36 else vW2b; off=(u%36)*1024
    d=AF+4*slot
    if 'b128' in FLAGS: return [I(f"ds_read_b128 {vr(d,4)}, v{vT2} offset:{(u*1024+8192)%65536}")]
    return [I(f"ds_read_b64_tr_b16 {vr(d,2)}, v{base} offset:{off}"), I(f"ds_read_b64_tr_b16 {vr(d+2,2)}, v{base} offset:{off+512}")]
def bias_load(t):
    return [I(f"ds_read_b128 {vr(Pbuf(t)+4*m,4)}, v{vP16} offset:{PB1+128*t+32*m}") for m in range(4)]
NH=24
def interleave_x(T, M):
    if not M: return list(T)
    cost=[2 if x.trans else 1 for x in T]; tot=sum(cost)
    out=[]; n=len(M); k=0; acc=0
    for x,c in zip(T,cost):
        while k<n and acc>=k*tot/n-1e-9:
            out.append(M[k]); k+=1
        out.append(x); acc+=c
    out+=M[k:]
    return out
PRIO_S={0:0,1:2}
FLAGS=set()
def step_parts(j, role):
    Sa=[];Sb=[];Sc=[];Xe=[];Xr=[];Xc=[]
    if 0<=j+1<NH:
        p=Preg(j+1); z=Zreg(j+1)
        Sa+= [I(f"v_fma_f32 v{z+k}, -v{p+k}, v{p+k}, s{sA}") for k in range(8)]
        Sa+= [I(f"v_mul_f32 v{z+k}, v{z+k}, v{p+k}") for k in range(8)]
        Xe+= [I(f"v_exp_f32 v{z+k}, v{z+k}") for k in range(8)]
    if 0<=j<NH:
        z=Zreg(j)
        Sb+= [I(f"v_add_f32 v{z+k}, 1.0, v{z+k}") for k in range(8)]
        Xr+= [I(f"v_rcp_f32 v{z+k}, v{z+k}") for k in range(8)]
    if 0<=j-1<NH:
        z=Zreg(j-1); p=Preg(j-1)
        Sc+= [I(f"v_mul_f32 v{z+k}, v{z+k}, v{p+k}") for k in range(8)]
        Xc+= [I(f"v_cvt_pk_bf16_f32 v{G+k}, v{z+2*k}, v{z+2*k+1}") for k in range(4)]
    S=Sc+Sb+Sa
    def m1(jj):
        if jj+3<0: return None
        t=(jj+3)//2; part=(jj+3)%2
        return (t,part) if 0<=t<12 else None
    def m2(jj):
        q=jj-1
        return q if 0<=q<NH else None
    M=[]
    c1=m1(j); c2=m2(j)
    if c1:
        t,part=c1
        M+=[MF(Pbuf(t),AF+4*k,H+4*(3*part+k)) for k in range(3)]
    if c2 is not None:
        M+=[MF(ACC+16*k,AF+4*(3+k),G,"0" if c2==0 else None) for k in range(3)]
    if c1: X=interleave_x(Xc+Xr+Xe,M)
    else: X=Xc+interleave_x(Xr+Xe,M)
    jl=j+1 if role==0 else j
    L=[]
    n1=m1(jl); n2=m2(jl)
    if n1:
        t,part=n1
        for k in range(3): L+=frag_w1(k,t,3*part+k)
    if n2 is not None:
        for k in range(3): L+=frag_w2(3+k,n2,k)
    if (j+4)%2==0 and 0<=(j+4)//2<12:
        L+=bias_load((j+4)//2)
    if 'noL' in FLAGS and 2<=j<=20: L=[]
    if 'noM' in FLAGS and 2<=j<=20: X=[x for x in X if x.kind!='mfma']
    if 'noM2' in FLAGS and 2<=j<=20: X=[x for x in X if not (x.kind=='mfma' and x.defs[0][1]>=ACC and x.defs[0][1]<ACC+48)]
    if 'noT' in FLAGS and 2<=j<=20: X=[x for x in X if not x.trans]
    if 'noS' in FLAGS and 2<=j<=20: S=[]
    return S,X,L
VSTEPS=[-1,0,2,3,5,6,8,9,11,12,14,15]
def st_x(n):
    return I(f"buffer_store_dwordx4 {vr(XC+4*n,4)}, v{vG}, s[{sO}:{sO+3}], s{sOFFO} offen offset:{32*n}")
def ld_x(k):
    return I(f"buffer_load_dwordx4 {vr(XN+4*k,4)}, v{vG}, s[{sX}:{sX+3}], s{sOFFN} offen offset:{32*k}")
def vsched(role):
    seq=[('s',0),('s',1),('l',0),('l',1),('s',2),('s',3),('l',2),('l',3),('s',4),('s',5),('l',4),('l',5)]
    V=[-1,0,1,2,7,8,9,10,15,16,17,18]
    if not FLAGS&{'v1','v3','v4','v5'}:
        seq=[('s',n) for n in range(6)]+[('l',n) for n in range(6)]
        V=[-1,0,1,2,3,4,5,9,10,14,15,19]
    if 'v2' in FLAGS: V=[-1,0,1,2,3,4,5,6,11,12,17,18]
    if 'v6' in FLAGS: V=[-1,0,1,2,3,4,5,10,11,16,17,22]
    if 'v7' in FLAGS: V=[-1,0,1,2,3,4,5,9,10,14,15,19]
    if 'v8' in FLAGS: V=[-1,0,1,2,3,4,5,11,12,18,19,23-role]
    if 'v3' in FLAGS: V=[-1,0,1,2,6,7,8,9,13,14,15,16]
    if 'v4' in FLAGS:
        seq=[('s',n) for n in range(6)]+[('l',n) for n in range(6)]
        V=[-1,0,1,2,3,4,5,6,7,8,9,10]
    if 'v5' in FLAGS:
        seq=[('s',n) for n in range(6)]+[('l',n) for n in range(6)]
        V=[-1,0,1,2,3,4,6,8,10,12,14,16]
    return seq,[v+role for v in V]
def vm_sched(j,role):
    seq,pos=vsched(role)
    mv=[];vm=[]
    if j in pos:
        n=pos.index(j); k,a=seq[n]
        vm.append(st_x(a) if k=='s' else ld_x(a))
        if k=='l' and a%2==0:
            rt=a//2
            mv=[I(f"v_mov_b32 v{XC+8*rt+r}, v{XN+8*rt+r}") for r in range(8)]
    return mv,vm
def emit_step(j,role):
    S,X,L=step_parts(j,role)
    mv,vm=vm_sched(j,role)
    S=mv+S; L=L+vm
    P1=[I("s_setprio 1")]; P0=[I(f"s_setprio {PRIO_S[role]}")]
    if role==0:
        W=[I("s_waitcnt lgkmcnt(0)")] if any(x.kind=='mfma' for x in X) else []
        return S+(P1+W+X+P0 if X else [])+L
    else:
        X2=[];seen=0
        nb=len([x for x in L if x.op=='ds_read_b128'])
        ntr=len(L)-nb
        mf=[x for x in X if x.kind=='mfma']
        has1=any(x.defs[0][1]>=P for x in mf); has2=any(x.defs[0][1]<P for x in mf)
        first2=None
        for x in X:
            if x.kind=='mfma' and x.defs[0][1]<P and first2 is None and has1:
                first2=x; X2.append(I(f"s_waitcnt lgkmcnt({nb})"))
            X2.append(x)
        W=[]
        if mf: W=[I(f"s_waitcnt lgkmcnt({min(15,(ntr-6+nb) if (has1 and has2) else nb)})")]
        return S+L+(P1+W+X2+P0 if X else [])
def epi_res(rt):
    return [MF(XB,IR,XC+8*rt),MF(XB,IR+4,XC+8*rt+4)]
def epi_ld_gb(rt): return [I(f"ds_read_b128 {vr(XB+4*m,4)}, v{vP16} offset:{PGB+128*rt+32*m}") for m in range(4)]
def epi_ld_g(rt,dst): return [I(f"ds_read_b128 {vr(dst+4*m,4)}, v{vP16} offset:{PG+128*rt+32*m}") for m in range(4)]
def epi_fma(rt,g): return [I(f"v_fma_f32 v{ACC+16*rt+r}, v{ACC+16*rt+r}, v{g+r}, v{XB+r}") for r in range(16)]
def epi_cvt(rt,dst=None):
    d=ACC+16*rt if dst is None else dst
    return [I(f"v_cvt_pk_bf16_f32 v{d+q}, v{ACC+16*rt+2*q}, v{ACC+16*rt+2*q+1}") for q in range(8)]
def dma(m):
    o=[]
    for i in range(3):
        o.append(I(f"s_add_u32 m0, s23, {m*12288+i*4096}"))
        o.append(I(f"buffer_load_dwordx4 v{XB}, s[{sW1}:{sW1+3}], s{70+i} offen lds"))
    if m<5: o.append(I(f"v_add_u32 v{XB}, s22, v{XB}"))
    return o
def epi_st(rt): return [I(f"buffer_store_dwordx4 {vr(ACC+16*rt+4*kl,4)}, v{vG}, s[{sO}:{sO+3}], s{sOFFO} offen offset:{(2*rt+kl)*32}") for kl in range(2)]
ROLE=[0]
def X_(l): return [I("s_setprio 1")]+l+[I(f"s_setprio {PRIO_S[ROLE[0]]}")]
def boundary(role, epi):
    o=[]
    DM=Z
    GT=H
    o+=[I(f"ds_read_b128 {vr(AF+4*k,4)}, v{vP16} offset:{PDW+32*k}") for k in range(6)]
    if epi: o+=epi_ld_gb(0)
    else: o+=dma(1)+dma(2)
    o+=[I(f"s_mov_b32 s{sOFFC}, s{sOFFN}"),I(f"s_add_u32 s{sOFFN}, s{sOFFN}, {2048*6144}"),
        I(f"s_cmp_eq_u32 s{sCNT}, 1"),I(f"s_cselect_b32 s{sX+2}, 0, 50331648")]
    for k in range(6):
        o.append(MF(DM,AF+4*k,XN+4*k,"0" if k==0 else None))
        o.append(I(f"ds_read_b128 {vr(AF+4*k,4)}, v{vFr} offset:{1024*k}"))
    if epi:
        o+=epi_res(0); o+=epi_ld_g(0,GT)
    o+=[I(f"v_mul_f32 v{DM+r}, s{sM96}, v{DM+r}") for r in range(16)]
    for rt in range(3):
        o.append(MF(P+16*rt,AF+8*rt,XN+8*rt,DM))
    for rt in range(3):
        o.append(MF(P+16*rt,AF+8*rt+4,XN+8*rt+4))
    if epi:
        o+=epi_fma(0,GT)
        o+=epi_ld_gb(1); o+=epi_ld_g(1,GT)
        o+=X_(epi_cvt(0,XC))
        o+=epi_res(1)
    if not epi: o+=[I("s_waitcnt vmcnt(6)")]+(stamp(5) if 'pst' in FLAGS else [])+[I("s_barrier")]+(stamp(2) if 'tc4' in FLAGS else [])
    for k in range(3): o+=frag_w1(k,0,k)
    ss=[]
    for n in range(48):
        c=P+n; a=G+(n%4)
        if n<4: ss.append(I(f"v_mul_f32 v{a}, v{c}, v{c}"))
        else: ss.append(I(f"v_fma_f32 v{a}, v{c}, v{c}, v{a}"))
    o+=ss
    o+=[I(f"v_add_f32 v{G}, v{G}, v{G+1}"),I(f"v_add_f32 v{G+2}, v{G+2}, v{G+3}"),I(f"v_add_f32 v{G}, v{G}, v{G+2}"),
        I(f"v_mov_b32 v{vT1}, v{G}"),
        I(f"v_permlane32_swap_b32 v{vT1}, v{G}"),
        I(f"v_add_f32 v{G}, v{G}, v{vT1}"),
        I(f"v_fma_f32 v{G}, v{G}, s{sVS}, v{vT3}"),
        I(f"v_rsq_f32 v{vRHO}, v{G}")]
    if epi:
        o+=epi_fma(1,GT)
        o+=epi_ld_gb(2); o+=epi_ld_g(2,Z)
    for rt in range(3):
        o+=[I(f"v_mul_f32 v{P+16*rt+r}, v{vRHO}, v{P+16*rt+r}") for r in range(16)]
        if rt==0 and epi:
            o+=epi_res(2)
        o+=X_([I(f"v_cvt_pk_bf16_f32 v{H+8*rt+q}, v{P+16*rt+2*q}, v{P+16*rt+2*q+1}") for q in range(8)])
        if rt==0: o+=bias_load(0)
    for k in range(3):
        o.append(MF(Pbuf(0),AF+4*k,H+4*k)); o+=frag_w1(k,0,3+k)
    if epi:
        o+=X_(epi_cvt(1,XC+8))
    else: o+=dma(3)+dma(4)+dma(5)
    for k in range(3):
        o.append(MF(Pbuf(0),AF+4*k,H+4*(3+k))); o+=frag_w1(k,1,k)
    o+=bias_load(1)
    if epi:
        o+=epi_fma(2,Z); o+=X_(epi_cvt(2,XC+16))
    return o
def final_epi():
    o=[]
    for rt in range(3):
        o+=epi_ld_gb(rt); o+=epi_ld_g(rt,H); o+=epi_res(rt); o+=epi_fma(rt,H); o+=epi_cvt(rt); o+=epi_st(rt)
    return o
def xloads(dst): return [I(f"buffer_load_dwordx4 {vr(dst+4*k,4)}, v{vG}, s[{sX}:{sX+3}], s{sOFFN} offen offset:{32*k}") for k in range(6)]
def steps(role):
    o=[]
    last=24
    for j in range(-1,last+1):
        if 'fine' in FLAGS:
            if j==5: o+=cstamp(3)
            if j==7: o+=cstamp(4)
            if j==8: o+=cstamp(5)
        else:
            if j==-1: o+=cstamp(3)
            if j==4: o+=cstamp(4)
            if j==10: o+=cstamp(5)
            if j==17: o+=cstamp(6)
        _,pos=vsched(role)
        if j==0: o+=[I(f"s_waitcnt vmcnt({9+len([p for p in pos if p<0])})"),I("s_barrier")]
        if j==8: o+=[I(f"s_waitcnt vmcnt({len([p for p in pos if p<8])})"),I("s_barrier")]+(cstamp(6) if 'fine' in FLAGS else [])
        o+=emit_step(j,role)
    return o
def finalize(prog, lds=None, vm=None, hist=None):
    p,l,v=insert_waits(prog,lds,vm)
    p=insert_nops(p,hist)
    return p,l,v
def expand_prefetch(prog, tag, do):
    out=[]
    for ins in prog:
        if ins.op=='PREFETCH':
            if do=='always': out+=xloads(XN)
            else:
                out+= [I(f"s_mov_b32 s{sOFFC}, s{sOFFN}"),I(f"s_cmp_eq_u32 s{sCNT}, 1"),I(f"s_cbranch_scc1 L_nopf_{tag}"),I(f"s_add_u32 s{sOFFN}, s{sOFFN}, {2048*6144}")]+xloads(XN)+[I(f"L_nopf_{tag}:")]
        else: out.append(ins)
    return out
def prologue():
    o=[]
    A=lambda t:o.append(I(t))
    A("s_cmp_ge_u32 s2, 256"); A("s_cbranch_scc1 L_end")
    A("s_load_dwordx16 s[36:51], s[0:1], 0")
    A(f"v_lshrrev_b32 v{vT1}, 6, v0")
    A(f"v_mov_b32 v{vT2}, v0")
    A(f"v_and_b32 v{vT}, 63, v0")
    A(f"v_readfirstlane_b32 s{sWAVE}, v{vT1}")
    L=vT; t0=P
    A(f"v_lshrrev_b32 v{t0}, 5, v{L}")
    A(f"v_and_b32 v{t0+1}, 31, v{L}")
    A(f"v_mul_u32_u24 v{vG}, 192, v{t0+1}"); A(f"v_lshl_add_u32 v{vG}, v{t0}, 4, v{vG}")
    q=P+8
    A(f"v_lshlrev_b32 v{q}, 1, v{vT2}")
    A(f"v_lshlrev_b32 v{q+2}, 2, v{L}")
    A(f"v_lshlrev_b32 v{q+6}, 4, v{t0}")
    A(f"s_lshl_b32 s{sOFFN}, s2, 3"); A(f"s_add_u32 s{sOFFN}, s{sOFFN}, s{sWAVE}"); A(f"s_mul_i32 s{sOFFN}, s{sOFFN}, 6144")
    A(f"s_lshl_b32 s68, s{sWAVE}, 5"); A("s_min_u32 s68, s68, 160")
    A(f"s_and_b32 s16, s{sWAVE}, 3")
    A(f"s_cmp_ge_u32 s{sWAVE}, 4")
    A("s_cselect_b32 s17, 86, 43")
    A("s_cselect_b32 s18, 3, 6")
    A("s_cselect_b32 s19, 3072, 64")
    A("s_cselect_b32 s20, 64, 12288")
    A("s_cselect_b32 s21, 3, 12")
    A("s_cselect_b32 s22, 0x60, 1")
    A(f"s_cselect_b32 s23, {W2B}, 0")
    A("s_lshl_b32 s21, s21, 6"); A("s_lshl_b32 s22, s22, 7")
    A("s_lshl_b32 s73, s16, 10"); A("s_add_u32 s23, s23, s73")
    d=P+24
    A(f"v_lshrrev_b32 v{d}, 2, v{L}")
    A(f"v_and_b32 v{d+1}, 3, v{L}")
    A(f"v_mul_lo_u32 v{XB}, v{d}, s21"); A(f"v_lshl_add_u32 v{XB}, v{d+1}, 4, v{XB}")
    for i in range(3):
        A(f"s_add_u32 s73, s16, {4*i}")
        A("s_mul_i32 s74, s73, s17"); A("s_lshr_b32 s74, s74, 8")
        A("s_mul_i32 s75, s74, s18"); A("s_sub_u32 s75, s73, s75")
        A("s_mul_i32 s74, s74, s19"); A("s_mul_i32 s75, s75, s20"); A(f"s_add_u32 s{70+i}, s74, s75")
    A("s_lshr_b32 s25, s2, 3"); A("s_and_b32 s25, s25, 31"); A("s_mul_i32 s73, s25, 57"); A("s_lshr_b32 s73, s73, 10"); A("s_mul_i32 s73, s73, 18")
    A("s_sub_u32 s25, s25, s73"); A("s_lshl_b32 s25, s25, 12"); A(f"v_lshlrev_b32 v{P+41}, 6, v{L}")
    A("s_waitcnt lgkmcnt(0)")
    if 'pst' in FLAGS: o.extend(stamp(1))
    def srd(d,p,n):
        A(f"s_mov_b32 s{d}, s{p}"); A(f"s_and_b32 s{d+1}, s{p+1}, 0xffff"); A(f"s_mov_b32 s{d+2}, {n}"); A(f"s_mov_b32 s{d+3}, 0x20000")
    A(f"s_cmp_ge_u32 s{sWAVE}, 4")
    A(f"s_cselect_b32 s{sW1}, s44, s40"); A(f"s_cselect_b32 s{sW1+1}, s45, s41"); A(f"s_and_b32 s{sW1+1}, s{sW1+1}, 0xffff")
    A(f"s_mov_b32 s{sW1+3}, 0x20000")
    A("s_cmp_eq_u32 s16, 0"); A(f"s_cselect_b32 s{sW1+2}, 73728, 0")
    if 'nopf' not in FLAGS: A(f"buffer_load_dword v{P+40}, v{P+41}, s[{sW1}:{sW1+3}], s25 offen")
    srd(56,42,768); srd(64,48,192); srd(60,46,192); srd(52,38,192)
    A(f"buffer_load_ushort v{q+1}, v{q}, s[56:59], 0 offen")
    A(f"buffer_load_dword v{q+3}, v{q+2}, s[64:67], 0 offen")
    A(f"buffer_load_dword v{q+4}, v{q+2}, s[60:63], 0 offen")
    A(f"buffer_load_dword v{q+5}, v{q+2}, s[52:55], 0 offen")
    A(f"buffer_load_dwordx4 {vr(q+8,4)}, v{q+6}, s[52:55], s68 offen")
    srd(sX,36,50331648)
    o.extend(xloads(XN))
    A(f"s_mov_b32 s{sW1+2}, 73728")
    if 'nob0' not in FLAGS: A('s_barrier')
    o.extend(dma(0))
    if 'pst' in FLAGS: o.extend(stamp(2))
    srd(sO,50,0)
    A(f"s_mov_b32 s{sA}, {hx(AC)}"); A(f"s_mov_b32 s{sM96}, {hx(-1.0/96)}"); A(f"s_mov_b32 s{sVS}, {hx(1.0/(96*SC*SC))}")
    A(f"s_mov_b32 s{sSC}, {hx(SC)}"); A(f"s_mov_b32 s{sISC}, {hx(1.0/SC)}")
    A(f"v_mov_b32 v{vT3}, {hx(1e-5/(SC*SC))}")
    A(f"v_lshlrev_b32 v{vP16}, 4, v{t0}"); A(f"v_add_u32 v{vP16}, {PAR}, v{vP16}")
    A(f"v_lshlrev_b32 v{vFr}, 4, v{L}"); A(f"v_add_u32 v{vFr}, {FR}, v{vFr}")
    e=P+32
    A(f"v_bfe_u32 v{e}, v{L}, 4, 1")
    A(f"v_bfe_u32 v{e+1}, v{L}, 2, 2")
    A(f"v_and_b32 v{e+2}, 3, v{L}")
    A(f"v_lshlrev_b32 v{e+3}, 6, v{e+1}")
    A(f"v_lshl_add_u32 v{e+3}, v{e}, 5, v{e+3}")
    A(f"v_lshl_add_u32 v{vW1a}, v{e+2}, 3, v{e+3}")
    A(f"v_lshl_add_u32 v{vW1a}, v{t0}, 9, v{vW1a}")
    A(f"v_add_u32 v{vW1b}, 36864, v{vW1a}")
    A(f"v_and_b32 v{e+4}, 1, v{L}"); A(f"v_bfe_u32 v{e+5}, v{L}, 1, 1")
    A(f"v_lshl_add_u32 v{e+3}, v{e+4}, 4, v{e+3}"); A(f"v_lshl_add_u32 v{e+3}, v{e+5}, 3, v{e+3}")
    A(f"v_lshl_add_u32 v{vW2a}, v{t0}, 8, v{e+3}")
    A(f"v_add_u32 v{vW2a}, {W2B}, v{vW2a}"); A(f"v_add_u32 v{vW2b}, 36864, v{vW2a}")
    m=Z
    A(f"v_bfe_u32 v{m}, v{L}, 2, 1")
    A(f"v_and_b32 v{m+1}, 1, v{L}")
    A(f"v_mov_b32 v{m+2}, 0xffff"); A(f"v_mov_b32 v{m+3}, 0xffff0000")
    A(f"v_cmp_eq_u32 vcc, 1, v{m+1}"); A(f"v_cndmask_b32 v{m+2}, v{m+2}, v{m+3}, vcc")
    A(f"v_cmp_eq_u32 vcc, v{m}, v{t0}"); A(f"v_cndmask_b32 v{m+2}, 0, v{m+2}, vcc")
    A(f"v_bfe_u32 v{m+3}, v{L}, 4, 1"); A(f"v_bfe_u32 v{m+4}, v{L}, 3, 1"); A(f"v_bfe_u32 v{m+5}, v{L}, 1, 1")
    A(f"v_lshlrev_b32 v{m+3}, 2, v{m+3}"); A(f"v_lshl_add_u32 v{m+3}, v{m+4}, 1, v{m+3}"); A(f"v_add_u32 v{m+3}, v{m+3}, v{m+5}")
    for n in range(8):
        A(f"v_cmp_eq_u32 vcc, {n}, v{m+3}"); A(f"v_cndmask_b32 v{m+8+n}, 0, v{m+2}, vcc")
    for n in range(8): A(f"v_and_b32 v{IR+n}, 0x3f803f80, v{m+8+n}")
    A("s_waitcnt vmcnt(9)")
    if 'pst' in FLAGS: o.extend(stamp(3))
    A(f"s_cmp_ge_u32 s{sWAVE}, 6"); A("s_cbranch_scc1 L_p67")
    A(f"v_lshlrev_b32 v{q+1}, 16, v{q+1}"); A(f"v_mul_f32 v{q+1}, s{sSC}, v{q+1}")
    A(f"v_lshlrev_b32 v{q}, 2, v{vT2}"); A(f"v_add_u32 v{q}, {PAR+PB1}, v{q}"); A(f"ds_write_b32 v{q}, v{q+1}")
    A(f"s_bitcmp1_b32 s{sWAVE}, 0"); A("s_cbranch_scc0 L_kl0")
    for n in range(4): A(f"v_mov_b32 v{m+8+n}, v{m+12+n}")
    A("L_kl0:")
    for n in range(4): A(f"v_and_b32 v{q+8+n}, v{q+8+n}, v{m+8+n}")
    A(f"s_lshl_b32 s68, s{sWAVE}, 10"); A(f"v_add_u32 v{q}, s68, v{vFr}"); A(f"ds_write_b128 v{q}, {vr(q+8,4)}")
    A("s_branch L_pdone")
    A("L_p67:")
    A(f"v_cmp_gt_u32 vcc, 48, v{L}"); A("s_and_saveexec_b64 s[74:75], vcc")
    A(f"s_cmp_eq_u32 s{sWAVE}, 7"); A("s_cbranch_scc1 L_p7")
    A(f"v_lshlrev_b32 v{q+8}, 16, v{q+3}"); A(f"v_and_b32 v{q+9}, 0xffff0000, v{q+3}")
    A(f"v_lshlrev_b32 v{q+10}, 16, v{q+4}"); A(f"v_and_b32 v{q+11}, 0xffff0000, v{q+4}")
    A(f"v_mul_f32 v{q+10}, v{q+8}, v{q+10}"); A(f"v_mul_f32 v{q+11}, v{q+9}, v{q+11}")
    A(f"v_mul_f32 v{q+8}, s{sISC}, v{q+8}"); A(f"v_mul_f32 v{q+9}, s{sISC}, v{q+9}")
    A(f"v_lshrrev_b32 v{q}, 4, v{L}"); A(f"v_lshlrev_b32 v{q}, 7, v{q}")
    A(f"v_bfe_u32 v{q+1}, v{L}, 3, 1"); A(f"v_lshl_add_u32 v{q}, v{q+1}, 6, v{q}")
    A(f"v_bfe_u32 v{q+1}, v{L}, 1, 1"); A(f"v_lshl_add_u32 v{q}, v{q+1}, 5, v{q}")
    A(f"v_bfe_u32 v{q+1}, v{L}, 2, 1"); A(f"v_lshl_add_u32 v{q}, v{q+1}, 4, v{q}")
    A(f"v_and_b32 v{q+1}, 1, v{L}"); A(f"v_lshl_add_u32 v{q}, v{q+1}, 3, v{q}")
    A(f"v_add_u32 v{q}, {PAR}, v{q}")
    A(f"ds_write_b64 v{q}, {vr(q+8,2)} offset:{PG}"); A(f"ds_write_b64 v{q}, {vr(q+10,2)} offset:{PGB}")
    A("s_branch L_p67e")
    A("L_p7:")
    A(f"v_add_u32 v{q}, {PAR+PDW}, v{q+2}"); A(f"ds_write_b32 v{q}, v{q+5}")
    A("L_p67e:")
    A("s_mov_b64 exec, s[74:75]")
    A("L_pdone:")
    if 'b128' in FLAGS: A(f"v_lshlrev_b32 v{vT2}, 4, v{L}")
    A("s_waitcnt vmcnt(3) lgkmcnt(0)")
    if 'pst' in FLAGS: o.extend(stamp(4))
    A("s_barrier")
    return o
STAMP=False
nst=[0]
def stamp(k):
    if not STAMP: return []
    return [I(f"s_memtime s[{76+2*k}:{77+2*k}]"),I("s_memrealtime s[96:97]"),I("s_waitcnt lgkmcnt(0)"),I(f"s_mov_b32 s{77+2*k}, s96")]
CST=[0]
def cstamp(k):
    if not STAMP or 'tst' not in FLAGS: return []
    CST[0]+=1; n=CST[0]
    tc=[int(f[2:]) for f in FLAGS if f.startswith('tc')][0]
    return [I(f"s_cmp_lg_u32 s{sCNT}, {tc}"),I(f"s_cbranch_scc1 L_cst{n}"),I(f"s_memtime s[{76+2*k}:{77+2*k}]"),I("s_memrealtime s[96:97]"),I("s_waitcnt lgkmcnt(0)"),I(f"s_mov_b32 s{77+2*k}, s96"),I(f"L_cst{n}:")]
def stamp_loop(tag):
    if not STAMP or 'pst' in FLAGS or 'tst' in FLAGS: return []
    o=[]
    for c in range(4,0,-1):
        o+=[I(f"s_cmp_lg_u32 s{sCNT}, {c}"),I(f"s_cbranch_scc1 L_st{tag}{c}"),I(f"s_memtime s[{76+2*(7-c)}:{77+2*(7-c)}]"),I("s_memrealtime s[96:97]"),I("s_waitcnt lgkmcnt(0)"),I(f"s_mov_b32 s{77+2*(7-c)}, s96"),I(f"L_st{tag}{c}:")]
    return o
def stamp_end():
    if not STAMP: return []
    o=[I("s_waitcnt vmcnt(0)"),I("s_memtime s[90:91]"),I("s_memrealtime s[92:93]"),I("s_load_dwordx2 s[36:37], s[0:1], 72"),I("s_waitcnt lgkmcnt(0)"),I("s_mov_b32 s91, s92"),
       I("s_lshl_b32 s38, s2, 3"),I(f"s_add_u32 s38, s38, s{sWAVE}"),I("s_lshl_b32 s38, s38, 7"),I("v_mov_b32 v14, s38")]
    for k in range(8):
        o+=[I(f"v_mov_b32 v12, s{76+2*k}"),I(f"v_mov_b32 v13, s{77+2*k}"),I(f"global_store_dwordx2 v14, v[12:13], s[36:37] offset:{8*k}"),I("s_nop 1")]
    o+=[I("v_mov_b32 v12, s92"),I("v_mov_b32 v13, s93"),I("global_store_dwordx2 v14, v[12:13], s[36:37] offset:112"),I("s_nop 1")]
    o+=[I("v_mov_b32 v12, s94"),I("v_mov_b32 v13, s95"),I("global_store_dwordx2 v14, v[12:13], s[36:37] offset:120")]
    return o
def build():
    out=[]
    pro=prologue()
    p,l,v=finalize(pro)
    if STAMP: p=p[:2]+[I("s_memrealtime s[94:95]")]+stamp(0)+p[2:]
    out+=p
    if 'pst' not in FLAGS and ('tst' not in FLAGS or 'tc4' in FLAGS): out+=stamp(1)
    out.append(I(f"s_mov_b32 s{sCNT}, 4"))
    out.append(I(f"s_cmp_ge_u32 s{sWAVE}, 4")); out.append(I("s_cbranch_scc1 L_roleB"))
    for role in (0,1):
        tag="AB"[role]; ROLE[0]=role
        if role==1: out.append(I("L_roleB:"))
        out.append(I(f"s_setprio {PRIO_S[role]}"))
        first=expand_prefetch(boundary(role,False),tag+"0",'cond')
        st=steps(role)
        p,l,v=finalize(first); out+=p
        if 'tst' not in FLAGS: out+=stamp(6 if 'pst' in FLAGS else 2)
        out.append(I("s_nop 7")); out.append(I(f"s_branch L_steps{tag}"))
        out.append(I(".p2align 6"))
        out.append(I(f"L_loop{tag}:"))
        body=cstamp(1)+[I("s_waitcnt vmcnt(0) lgkmcnt(0)")]+cstamp(2)+expand_prefetch(boundary(role,True),tag+"1",'cond')
        stp,l2,v2=finalize(st,l,v)
        bp,l3,v3=finalize(body,[],[],stp[-40:])
        assert len(l3)==len(l) or True
        out+=bp
        out.append(I(f"L_steps{tag}:"))
        stp,_,_=finalize([I("s_waitcnt lgkmcnt(0)")]+st,[],[],bp[-40:])
        out+=stp
        out+=stamp_loop(tag)
        out.append(I(f"s_mov_b32 s{sOFFO}, s{sOFFC}")); out.append(I(f"s_mov_b32 s{sO+2}, 50331648"))
        out.append(I(f"s_sub_u32 s{sCNT}, s{sCNT}, 1"));
        out.append(I(f"s_cmp_lg_u32 s{sCNT}, 0"))
        out.append(I(f"s_cbranch_scc1 L_loop{tag}_pre"))
        fe,_,_=finalize([I("s_waitcnt vmcnt(0) lgkmcnt(0)")]+final_epi(),[],[],stp[-40:])
        out+=fe
        out+=stamp_end()
        out.append(I("s_endpgm"))
        out.append(I(f"L_loop{tag}_pre:"))
        out.append(I(f"s_branch L_loop{tag}"))
    out.append(I("L_end:")); out.append(I("s_endpgm"))
    return out
HDR=open('standalone__modern_conv_block_convnext__vision.s.ref').read().split('\n')
def main(path):
    name="standalone__modern_conv_block_convnext__vision_kernel"
    hdr=[l for l in HDR if l.startswith(';') and not l.startswith('; @launch')]
    hdr=hdr[:hdr.index([l for l in hdr if 'Override launch' in l][0])+2]
    txt="\n".join(hdr)+f"\n; @launch grid=(256,1,1) block=(512,1,1) lds={LDSSZ}\n"
    txt+=f""".amdgcn_target "amdgcn-amd-amdhsa--gfx950"
.text
.globl {name}
.p2align 8
.type {name},@function
{name}:
"""
    for ins in build():
        t=ins.text
        txt+=(t if (ins.kind=='label' or t.startswith('.')) else "    "+t)+"\n"
    txt+=f""".section .rodata,"a"
.p2align 6
.amdhsa_kernel {name}
  .amdhsa_next_free_vgpr 256
  .amdhsa_next_free_sgpr 100
  .amdhsa_accum_offset 256
  .amdhsa_group_segment_fixed_size 0
  .amdhsa_kernarg_size 80
  .amdhsa_user_sgpr_count 2
  .amdhsa_user_sgpr_kernarg_segment_ptr 1
  .amdhsa_system_sgpr_workgroup_id_x 1
.end_amdhsa_kernel
"""
    open(path,'w').write(txt)
if __name__=='__main__':
    for a in sys.argv[2:]:
        for f in a.split(','):
            if f=='stamp': STAMP=True
            else: FLAGS.add(f)
    main(sys.argv[1] if len(sys.argv)>1 else 'standalone__modern_conv_block_convnext__vision.s')
```

```python
import sys, struct, math, argparse
from asmlib import *
def f2u(x): return struct.unpack('<I',struct.pack('<f',x))[0]
def hx(x): return f"0x{f2u(x):08x}"
k1=-2.0*math.sqrt(2.0/math.pi)*math.log2(math.e); k2=k1*0.044715
SC=(-k2)**(1.0/3.0); AC=k1/SC
vT=0; vW1a=1; vW1b=2; vW2a=3; vW2b=4; vP16=5; vFr=6; vG=7
vRHO=8; vT1=9; vT2=10; vT3=11
IR=12; XB=20; H=36; XC=60; XN=84; ACC=108; P=156; Z=204; G=228; AF=232
sX=4; sO=8; sW1=12; sW2=16; sS=20
sWAVE=24; sCNT=26; sOFFN=27; sOFFO=28; sOFFC=29; sA=30; sM96=31; sVS=32; sEPS=33; sSC=34; sISC=35
W2B=73728; PAR=147456; PB1=0; PG=1536; PGB=1920; PDW=2304; FR=PAR+2560; LDSSZ=FR+6144
def vr(b,n): return f"v[{b}:{b+n-1}]"
def MF(d,a,b,c=None):
    cs = vr(d,16) if c is None else (c if isinstance(c,str) else vr(c,16))
    return I(f"v_mfma_f32_32x32x16_bf16 {vr(d,16)}, {vr(a,4)}, {vr(b,4)}, {cs}")
def Preg(jj): return P+16*((jj//2)%3)+8*(jj%2)
def Pbuf(t): return P+16*(t%3)
def Zreg(jj): return Z+8*(jj%3)
def frag_w1(slot,t,ks):
    u=t*6+ks; base=vW1a if u<36 else vW1b; off=(u%36)*1024
    d=AF+4*slot
    if 'b128' in FLAGS: return [I(f"ds_read_b128 {vr(d,4)}, v{vT2} offset:{(u*1024)%65536}")]
    return [I(f"ds_read_b64_tr_b16 {vr(d,2)}, v{base} offset:{off}"), I(f"ds_read_b64_tr_b16 {vr(d+2,2)}, v{base} offset:{off+256}")]
def frag_w2(slot,jj,rt):
    u=jj*3+rt; base=vW2a if u<36 else vW2b; off=(u%36)*1024
    d=AF+4*slot
    if 'b128' in FLAGS: return [I(f"ds_read_b128 {vr(d,4)}, v{vT2} offset:{(u*1024+8192)%65536}")]
    return [I(f"ds_read_b64_tr_b16 {vr(d,2)}, v{base} offset:{off}"), I(f"ds_read_b64_tr_b16 {vr(d+2,2)}, v{base} offset:{off+512}")]
def bias_load(t):
    return [I(f"ds_read_b128 {vr(Pbuf(t)+4*m,4)}, v{vP16} offset:{PB1+128*t+32*m}") for m in range(4)]
NH=24
def interleave_x(T, M):
    if not M: return list(T)
    cost=[2 if x.trans else 1 for x in T]; tot=sum(cost)
    out=[]; n=len(M); k=0; acc=0
    for x,c in zip(T,cost):
        while k<n and acc>=k*tot/n-1e-9:
            out.append(M[k]); k+=1
        out.append(x); acc+=c
    out+=M[k:]
    return out
PRIO_S={0:0,1:2}
FLAGS=set()
def step_parts(j, role):
    Sa=[];Sb=[];Sc=[];Xe=[];Xr=[];Xc=[]
    if 0<=j+1<NH:
        p=Preg(j+1); z=Zreg(j+1)
        Sa+= [I(f"v_fma_f32 v{z+k}, -v{p+k}, v{p+k}, s{sA}") for k in range(8)]
        Sa+= [I(f"v_mul_f32 v{z+k}, v{z+k}, v{p+k}") for k in range(8)]
        Xe+= [I(f"v_exp_f32 v{z+k}, v{z+k}") for k in range(8)]
    if 0<=j<NH:
        z=Zreg(j)
        Sb+= [I(f"v_add_f32 v{z+k}, 1.0, v{z+k}") for k in range(8)]
        Xr+= [I(f"v_rcp_f32 v{z+k}, v{z+k}") for k in range(8)]
    if 0<=j-1<NH:
        z=Zreg(j-1); p=Preg(j-1)
        Sc+= [I(f"v_mul_f32 v{z+k}, v{z+k}, v{p+k}") for k in range(8)]
        Xc+= [I(f"v_cvt_pk_bf16_f32 v{G+k}, v{z+2*k}, v{z+2*k+1}") for k in range(4)]
    S=Sc+Sb+Sa
    def m1(jj):
        if jj+3<0: return None
        t=(jj+3)//2; part=(jj+3)%2
        return (t,part) if 0<=t<12 else None
    def m2(jj):
        q=jj-1
        return q if 0<=q<NH else None
    M=[]
    c1=m1(j); c2=m2(j)
    if c1:
        t,part=c1
        M+=[MF(Pbuf(t),AF+4*k,H+4*(3*part+k)) for k in range(3)]
    if c2 is not None:
        M+=[MF(ACC+16*k,AF+4*(3+k),G,"0" if c2==0 else None) for k in range(3)]
    if c1: X=interleave_x(Xc+Xr+Xe,M)
    else: X=Xc+interleave_x(Xr+Xe,M)
    jl=j+1 if role==0 else j
    L=[]
    n1=m1(jl); n2=m2(jl)
    if n1:
        t,part=n1
        for k in range(3): L+=frag_w1(k,t,3*part+k)
    if n2 is not None:
        for k in range(3): L+=frag_w2(3+k,n2,k)
    if (j+4)%2==0 and 0<=(j+4)//2<12:
        L+=bias_load((j+4)//2)
    if 'noL' in FLAGS and 2<=j<=20: L=[]
    if 'noM' in FLAGS and 2<=j<=20: X=[x for x in X if x.kind!='mfma']
    if 'noM2' in FLAGS and 2<=j<=20: X=[x for x in X if not (x.kind=='mfma' and x.defs[0][1]>=ACC and x.defs[0][1]<ACC+48)]
    if 'noT' in FLAGS and 2<=j<=20: X=[x for x in X if not x.trans]
    if 'noS' in FLAGS and 2<=j<=20: S=[]
    return S,X,L
VSTEPS=[-1,0,2,3,5,6,8,9,11,12,14,15]
def st_x(n):
    return I(f"buffer_store_dwordx4 {vr(XC+4*n,4)}, v{vG}, s[{sO}:{sO+3}], s{sOFFO} offen offset:{32*n}")
def ld_x(k):
    return I(f"buffer_load_dwordx4 {vr(XN+4*k,4)}, v{vG}, s[{sX}:{sX+3}], s{sOFFN} offen offset:{32*k}")
def vsched(role):
    seq=[('s',0),('s',1),('l',0),('l',1),('s',2),('s',3),('l',2),('l',3),('s',4),('s',5),('l',4),('l',5)]
    V=[-1,0,1,2,7,8,9,10,15,16,17,18]
    if not FLAGS&{'v1','v3','v4','v5'}:
        seq=[('s',n) for n in range(6)]+[('l',n) for n in range(6)]
        V=[-1,0,1,2,3,4,5,9,10,14,15,19]
    if 'v2' in FLAGS: V=[-1,0,1,2,3,4,5,6,11,12,17,18]
    if 'v6' in FLAGS: V=[-1,0,1,2,3,4,5,10,11,16,17,22]
    if 'v7' in FLAGS: V=[-1,0,1,2,3,4,5,9,10,14,15,19]
    if 'v8' in FLAGS: V=[-1,0,1,2,3,4,5,11,12,18,19,23-role]
    if 'v3' in FLAGS: V=[-1,0,1,2,6,7,8,9,13,14,15,16]
    if 'v4' in FLAGS:
        seq=[('s',n) for n in range(6)]+[('l',n) for n in range(6)]
        V=[-1,0,1,2,3,4,5,6,7,8,9,10]
    if 'v5' in FLAGS:
        seq=[('s',n) for n in range(6)]+[('l',n) for n in range(6)]
        V=[-1,0,1,2,3,4,6,8,10,12,14,16]
    return seq,[v+role for v in V]
def vm_sched(j,role):
    seq,pos=vsched(role)
    mv=[];vm=[]
    if j in pos:
        n=pos.index(j); k,a=seq[n]
        vm.append(st_x(a) if k=='s' else ld_x(a))
        if k=='l' and a%2==0:
            rt=a//2
            mv=[I(f"v_mov_b32 v{XC+8*rt+r}, v{XN+8*rt+r}") for r in range(8)]
    return mv,vm
def emit_step(j,role):
    S,X,L=step_parts(j,role)
    mv,vm=vm_sched(j,role)
    S=mv+S; L=L+vm
    P1=[I("s_setprio 1")]; P0=[I(f"s_setprio {PRIO_S[role]}")]
    if role==0:
        W=[I("s_waitcnt lgkmcnt(0)")] if any(x.kind=='mfma' for x in X) else []
        return S+(P1+W+X+P0 if X else [])+L
    else:
        X2=[];seen=0
        nb=len([x for x in L if x.op=='ds_read_b128'])
        ntr=len(L)-nb
        mf=[x for x in X if x.kind=='mfma']
        has1=any(x.defs[0][1]>=P for x in mf); has2=any(x.defs[0][1]<P for x in mf)
        first2=None
        for x in X:
            if x.kind=='mfma' and x.defs[0][1]<P and first2 is None and has1:
                first2=x; X2.append(I(f"s_waitcnt lgkmcnt({nb})"))
            X2.append(x)
        W=[]
        if mf: W=[I(f"s_waitcnt lgkmcnt({min(15,(ntr-6+nb) if (has1 and has2) else nb)})")]
        return S+L+(P1+W+X2+P0 if X else [])
def epi_res(rt):
    return [MF(XB,IR,XC+8*rt),MF(XB,IR+4,XC+8*rt+4)]
def epi_ld_gb(rt): return [I(f"ds_read_b128 {vr(XB+4*m,4)}, v{vP16} offset:{PGB+128*rt+32*m}") for m in range(4)]
def epi_ld_g(rt,dst): return [I(f"ds_read_b128 {vr(dst+4*m,4)}, v{vP16} offset:{PG+128*rt+32*m}") for m in range(4)]
def epi_fma(rt,g): return [I(f"v_fma_f32 v{ACC+16*rt+r}, v{ACC+16*rt+r}, v{g+r}, v{XB+r}") for r in range(16)]
def epi_cvt(rt,dst=None):
    d=ACC+16*rt if dst is None else dst
    return [I(f"v_cvt_pk_bf16_f32 v{d+q}, v{ACC+16*rt+2*q}, v{ACC+16*rt+2*q+1}") for q in range(8)]
def dma(m):
    o=[]
    for i in range(3):
        o.append(I(f"s_add_u32 m0, s23, {m*12288+i*4096}"))
        o.append(I(f"buffer_load_dwordx4 v{XB}, s[{sW1}:{sW1+3}], s{70+i} offen lds"))
    if m<5: o.append(I(f"v_add_u32 v{XB}, s22, v{XB}"))
    return o
def epi_st(rt): return [I(f"buffer_store_dwordx4 {vr(ACC+16*rt+4*kl,4)}, v{vG}, s[{sO}:{sO+3}], s{sOFFO} offen offset:{(2*rt+kl)*32}") for kl in range(2)]
ROLE=[0]
def X_(l):
    if 'bprio' in FLAGS: return [I("s_setprio 1")]+l+[I(f"s_setprio {PRIO_S[ROLE[0]]}")]
    return l
def epi_all_first(extra):
    o=[]
    GT=[H,Z,XB]
    for rt in range(3):
        o+=[I(f"ds_read_b128 {vr(P+16*rt+4*m,4)}, v{vP16} offset:{PGB+128*rt+32*m}") for m in range(4)]
    for rt in range(3):
        o+=[MF(P+16*rt,IR,XC+8*rt),MF(P+16*rt,IR+4,XC+8*rt+4)]
        o+=epi_ld_g(rt,GT[rt])
    for rt in range(3):
        o+=[I(f"v_fma_f32 v{ACC+16*rt+r}, v{ACC+16*rt+r}, v{GT[rt]+r}, v{P+16*rt+r}") for r in range(16)]
        if rt==0: o+=extra
        o+=epi_cvt(rt,XC+8*rt)
    return o
def boundary(role, epi):
    o=[]
    DM=Z
    GT=H
    if epi and 'bprio' not in FLAGS: o.append(I("s_setprio 0"))
    if epi and role==1 and 'noef' not in FLAGS:
        o+=epi_all_first([I(f"ds_read_b128 {vr(AF+4*k,4)}, v{vP16} offset:{PDW+32*k}") for k in range(6)]); epi=False; first=False; pdw=True
    else: first=not epi; pdw=False
    if not pdw: o+=[I(f"ds_read_b128 {vr(AF+4*k,4)}, v{vP16} offset:{PDW+32*k}") for k in range(6)]
    if epi: o+=epi_ld_gb(0)
    elif first: o+=dma(1)+dma(2)
    o+=[I(f"s_mov_b32 s{sOFFC}, s{sOFFN}"),I(f"s_add_u32 s{sOFFN}, s{sOFFN}, {2048*6144}"),
        I(f"s_cmp_eq_u32 s{sCNT}, 1"),I(f"s_cselect_b32 s{sX+2}, 0, 50331648")]
    for k in range(6):
        o.append(MF(DM,AF+4*k,XN+4*k,"0" if k==0 else None))
        o.append(I(f"ds_read_b128 {vr(AF+4*k,4)}, v{vFr} offset:{1024*k}"))
    if epi:
        o+=epi_res(0); o+=epi_ld_g(0,GT)
    o+=[I(f"v_mul_f32 v{DM+r}, s{sM96}, v{DM+r}") for r in range(16)]
    for rt in range(3):
        o.append(MF(P+16*rt,AF+8*rt,XN+8*rt,DM))
    for rt in range(3):
        o.append(MF(P+16*rt,AF+8*rt+4,XN+8*rt+4))
    if epi:
        o+=epi_fma(0,GT)
        o+=epi_ld_gb(1); o+=epi_ld_g(1,GT)
        o+=X_(epi_cvt(0,XC))
        o+=epi_res(1)
    if first: o+=[I("s_waitcnt vmcnt(6)")]+(stamp(5) if 'pst' in FLAGS else [])+[I("s_barrier")]+(stamp(2) if 'tc4' in FLAGS else [])
    for k in range(3): o+=frag_w1(k,0,k)
    ss=[]
    for n in range(48):
        c=P+n; a=G+(n%4)
        if n<4: ss.append(I(f"v_mul_f32 v{a}, v{c}, v{c}"))
        else: ss.append(I(f"v_fma_f32 v{a}, v{c}, v{c}, v{a}"))
    o+=ss
    o+=[I(f"v_add_f32 v{G}, v{G}, v{G+1}"),I(f"v_add_f32 v{G+2}, v{G+2}, v{G+3}"),I(f"v_add_f32 v{G}, v{G}, v{G+2}"),
        I(f"v_mov_b32 v{vT1}, v{G}"),
        I(f"v_permlane32_swap_b32 v{vT1}, v{G}"),
        I(f"v_add_f32 v{G}, v{G}, v{vT1}"),
        I(f"v_fma_f32 v{G}, v{G}, s{sVS}, v{vT3}"),
        I(f"v_rsq_f32 v{vRHO}, v{G}")]
    if epi:
        o+=epi_fma(1,GT)
        o+=epi_ld_gb(2); o+=epi_ld_g(2,Z)
    for rt in range(3):
        o+=[I(f"v_mul_f32 v{P+16*rt+r}, v{vRHO}, v{P+16*rt+r}") for r in range(16)]
        if rt==0 and epi:
            o+=epi_res(2)
        o+=X_([I(f"v_cvt_pk_bf16_f32 v{H+8*rt+q}, v{P+16*rt+2*q}, v{P+16*rt+2*q+1}") for q in range(8)])
        if rt==0: o+=bias_load(0)
    for k in range(3):
        o.append(MF(Pbuf(0),AF+4*k,H+4*k)); o+=frag_w1(k,0,3+k)
    if epi:
        o+=X_(epi_cvt(1,XC+8))
    elif first: o+=dma(3)+dma(4)+dma(5)
    for k in range(3):
        o.append(MF(Pbuf(0),AF+4*k,H+4*(3+k))); o+=frag_w1(k,1,k)
    o+=bias_load(1)
    if epi:
        o+=epi_fma(2,Z); o+=X_(epi_cvt(2,XC+16))
    return o
def final_epi():
    o=[]
    if 'oldfin' in FLAGS:
        for rt in range(3):
            o+=epi_ld_gb(rt); o+=epi_ld_g(rt,H); o+=epi_res(rt); o+=epi_fma(rt,H); o+=epi_cvt(rt); o+=epi_st(rt)
        return o
    o+=[I(f"s_mul_i32 s68, s{sWAVE}, 6144"),I(f"s_add_u32 s69, s68, {W2B-5*6144}"),I(f"s_cmp_ge_u32 s{sWAVE}, 5"),I("s_cselect_b32 s68, s69, s68"),
        I(f"v_add_u32 v{vW1a}, s68, v{vG}"),
        I(f"v_subrev_u32 v{vW1b}, {FR}, v{vFr}"),
        I(f"v_add_u32 v{vW2a}, s68, v{vW1b}"),
        I(f"v_add_u32 v{vW2b}, 0x1000, v{vW1b}")]
    GT=[H,Z,XB]
    for rt in range(3):
        o+=[I(f"ds_read_b128 {vr(P+16*rt+4*m,4)}, v{vP16} offset:{PGB+128*rt+32*m}") for m in range(4)]
    for rt in range(3):
        o+=[MF(P+16*rt,IR,XC+8*rt),MF(P+16*rt,IR+4,XC+8*rt+4)]
        o+=epi_ld_g(rt,GT[rt])
    for rt in range(3):
        o+=[I(f"v_fma_f32 v{ACC+16*rt+r}, v{ACC+16*rt+r}, v{GT[rt]+r}, v{P+16*rt+r}") for r in range(16)]
        o+=epi_cvt(rt)
        o+=[I(f"ds_write_b128 v{vW1a}, {vr(ACC+16*rt+4*kl,4)} offset:{(2*rt+kl)*32}") for kl in range(2)]
    o.append(I("s_waitcnt lgkmcnt(0)"))
    o+=[I(f"ds_read_b128 {vr(XN+4*k,4)}, v{vW2a} offset:{1024*k}") for k in range(6)]
    for k in range(6):
        o.append(I(f"buffer_store_dwordx4 {vr(XN+4*k,4)}, v{vW1b if k<4 else vW2b}, s[{sO}:{sO+3}], s{sOFFO} offen offset:{1024*(k%4)}"))
    return o
def xloads(dst): return [I(f"buffer_load_dwordx4 {vr(dst+4*k,4)}, v{vG}, s[{sX}:{sX+3}], s{sOFFN} offen offset:{32*k}") for k in range(6)]
def steps(role):
    o=[]
    last=24
    for j in range(-1,last+1):
        if 'fine' in FLAGS:
            if j==5: o+=cstamp(3)
            if j==7: o+=cstamp(4)
            if j==8: o+=cstamp(5)
        else:
            if j==-1: o+=cstamp(3)
            if j==4: o+=cstamp(4)
            if j==10: o+=cstamp(5)
            if j==17: o+=cstamp(6)
        _,pos=vsched(role)
        if j==0: o+=[I(f"s_waitcnt vmcnt({9+len([p for p in pos if p<0])})"),I("s_barrier")]
        if j==8: o+=[I(f"s_waitcnt vmcnt({len([p for p in pos if p<8])})"),I("s_barrier")]+(cstamp(6) if 'fine' in FLAGS else [])
        o+=emit_step(j,role)
    return o
def finalize(prog, lds=None, vm=None, hist=None):
    p,l,v=insert_waits(prog,lds,vm)
    p=insert_nops(p,hist)
    return p,l,v
def expand_prefetch(prog, tag, do):
    out=[]
    for ins in prog:
        if ins.op=='PREFETCH':
            if do=='always': out+=xloads(XN)
            else:
                out+= [I(f"s_mov_b32 s{sOFFC}, s{sOFFN}"),I(f"s_cmp_eq_u32 s{sCNT}, 1"),I(f"s_cbranch_scc1 L_nopf_{tag}"),I(f"s_add_u32 s{sOFFN}, s{sOFFN}, {2048*6144}")]+xloads(XN)+[I(f"L_nopf_{tag}:")]
        else: out.append(ins)
    return out
def prologue():
    o=[]
    A=lambda t:o.append(I(t))
    A("s_cmp_ge_u32 s2, 256"); A("s_cbranch_scc1 L_end")
    A("s_load_dwordx16 s[36:51], s[0:1], 0")
    A(f"v_lshrrev_b32 v{vT1}, 6, v0")
    A(f"v_mov_b32 v{vT2}, v0")
    A(f"v_and_b32 v{vT}, 63, v0")
    A(f"v_readfirstlane_b32 s{sWAVE}, v{vT1}")
    L=vT; t0=P
    A(f"v_lshrrev_b32 v{t0}, 5, v{L}")
    A(f"v_and_b32 v{t0+1}, 31, v{L}")
    A(f"v_mul_u32_u24 v{vG}, 192, v{t0+1}"); A(f"v_lshl_add_u32 v{vG}, v{t0}, 4, v{vG}")
    q=P+8
    A(f"v_lshlrev_b32 v{q}, 1, v{vT2}")
    A(f"v_lshlrev_b32 v{q+2}, 2, v{L}")
    A(f"v_lshlrev_b32 v{q+6}, 4, v{t0}")
    A(f"s_lshl_b32 s{sOFFN}, s2, 3"); A(f"s_add_u32 s{sOFFN}, s{sOFFN}, s{sWAVE}"); A(f"s_mul_i32 s{sOFFN}, s{sOFFN}, 6144")
    A(f"s_lshl_b32 s68, s{sWAVE}, 5"); A("s_min_u32 s68, s68, 160")
    A(f"s_and_b32 s16, s{sWAVE}, 3")
    A(f"s_cmp_ge_u32 s{sWAVE}, 4")
    A("s_cselect_b32 s17, 86, 43")
    A("s_cselect_b32 s18, 3, 6")
    A("s_cselect_b32 s19, 3072, 64")
    A("s_cselect_b32 s20, 64, 12288")
    A("s_cselect_b32 s21, 3, 12")
    A("s_cselect_b32 s22, 0x60, 1")
    A(f"s_cselect_b32 s23, {W2B}, 0")
    A("s_lshl_b32 s21, s21, 6"); A("s_lshl_b32 s22, s22, 7")
    A("s_lshl_b32 s73, s16, 10"); A("s_add_u32 s23, s23, s73")
    d=P+24
    A(f"v_lshrrev_b32 v{d}, 2, v{L}")
    A(f"v_and_b32 v{d+1}, 3, v{L}")
    A(f"v_mul_lo_u32 v{XB}, v{d}, s21"); A(f"v_lshl_add_u32 v{XB}, v{d+1}, 4, v{XB}")
    for i in range(3):
        A(f"s_add_u32 s73, s16, {4*i}")
        A("s_mul_i32 s74, s73, s17"); A("s_lshr_b32 s74, s74, 8")
        A("s_mul_i32 s75, s74, s18"); A("s_sub_u32 s75, s73, s75")
        A("s_mul_i32 s74, s74, s19"); A("s_mul_i32 s75, s75, s20"); A(f"s_add_u32 s{70+i}, s74, s75")
    A("s_lshr_b32 s25, s2, 3"); A("s_and_b32 s25, s25, 31"); A("s_mul_i32 s73, s25, 57"); A("s_lshr_b32 s73, s73, 10"); A("s_mul_i32 s73, s73, 18")
    A("s_sub_u32 s25, s25, s73"); A("s_lshl_b32 s25, s25, 12"); A(f"v_lshlrev_b32 v{P+41}, 6, v{L}")
    A("s_waitcnt lgkmcnt(0)")
    if 'pst' in FLAGS: o.extend(stamp(1))
    def srd(d,p,n):
        A(f"s_mov_b32 s{d}, s{p}"); A(f"s_and_b32 s{d+1}, s{p+1}, 0xffff"); A(f"s_mov_b32 s{d+2}, {n}"); A(f"s_mov_b32 s{d+3}, 0x20000")
    A(f"s_cmp_ge_u32 s{sWAVE}, 4")
    A(f"s_cselect_b32 s{sW1}, s44, s40"); A(f"s_cselect_b32 s{sW1+1}, s45, s41"); A(f"s_and_b32 s{sW1+1}, s{sW1+1}, 0xffff")
    A(f"s_mov_b32 s{sW1+3}, 0x20000")
    A("s_cmp_eq_u32 s16, 0"); A(f"s_cselect_b32 s{sW1+2}, 73728, 0")
    if 'nopf' not in FLAGS: A(f"buffer_load_dword v{P+40}, v{P+41}, s[{sW1}:{sW1+3}], s25 offen")
    srd(56,42,768); srd(64,48,192); srd(60,46,192); srd(52,38,192)
    A(f"buffer_load_ushort v{q+1}, v{q}, s[56:59], 0 offen")
    A(f"buffer_load_dword v{q+3}, v{q+2}, s[64:67], 0 offen")
    A(f"buffer_load_dword v{q+4}, v{q+2}, s[60:63], 0 offen")
    A(f"buffer_load_dword v{q+5}, v{q+2}, s[52:55], 0 offen")
    A(f"buffer_load_dwordx4 {vr(q+8,4)}, v{q+6}, s[52:55], s68 offen")
    srd(sX,36,50331648)
    o.extend(xloads(XN))
    A(f"s_mov_b32 s{sW1+2}, 73728")
    if 'nob0' not in FLAGS: A('s_barrier')
    o.extend(dma(0))
    if 'pst' in FLAGS: o.extend(stamp(2))
    srd(sO,50,0)
    A(f"s_mov_b32 s{sA}, {hx(AC)}"); A(f"s_mov_b32 s{sM96}, {hx(-1.0/96)}"); A(f"s_mov_b32 s{sVS}, {hx(1.0/(96*SC*SC))}")
    A(f"s_mov_b32 s{sSC}, {hx(SC)}"); A(f"s_mov_b32 s{sISC}, {hx(1.0/SC)}")
    A(f"v_mov_b32 v{vT3}, {hx(1e-5/(SC*SC))}")
    A(f"v_lshlrev_b32 v{vP16}, 4, v{t0}"); A(f"v_add_u32 v{vP16}, {PAR}, v{vP16}")
    A(f"v_lshlrev_b32 v{vFr}, 4, v{L}"); A(f"v_add_u32 v{vFr}, {FR}, v{vFr}")
    e=P+32
    A(f"v_bfe_u32 v{e}, v{L}, 4, 1")
    A(f"v_bfe_u32 v{e+1}, v{L}, 2, 2")
    A(f"v_and_b32 v{e+2}, 3, v{L}")
    A(f"v_lshlrev_b32 v{e+3}, 6, v{e+1}")
    A(f"v_lshl_add_u32 v{e+3}, v{e}, 5, v{e+3}")
    A(f"v_lshl_add_u32 v{vW1a}, v{e+2}, 3, v{e+3}")
    A(f"v_lshl_add_u32 v{vW1a}, v{t0}, 9, v{vW1a}")
    A(f"v_add_u32 v{vW1b}, 36864, v{vW1a}")
    A(f"v_and_b32 v{e+4}, 1, v{L}"); A(f"v_bfe_u32 v{e+5}, v{L}, 1, 1")
    A(f"v_lshl_add_u32 v{e+3}, v{e+4}, 4, v{e+3}"); A(f"v_lshl_add_u32 v{e+3}, v{e+5}, 3, v{e+3}")
    A(f"v_lshl_add_u32 v{vW2a}, v{t0}, 8, v{e+3}")
    A(f"v_add_u32 v{vW2a}, {W2B}, v{vW2a}"); A(f"v_add_u32 v{vW2b}, 36864, v{vW2a}")
    m=Z
    A(f"v_bfe_u32 v{m}, v{L}, 2, 1")
    A(f"v_and_b32 v{m+1}, 1, v{L}")
    A(f"v_mov_b32 v{m+2}, 0xffff"); A(f"v_mov_b32 v{m+3}, 0xffff0000")
    A(f"v_cmp_eq_u32 vcc, 1, v{m+1}"); A(f"v_cndmask_b32 v{m+2}, v{m+2}, v{m+3}, vcc")
    A(f"v_cmp_eq_u32 vcc, v{m}, v{t0}"); A(f"v_cndmask_b32 v{m+2}, 0, v{m+2}, vcc")
    A(f"v_bfe_u32 v{m+3}, v{L}, 4, 1"); A(f"v_bfe_u32 v{m+4}, v{L}, 3, 1"); A(f"v_bfe_u32 v{m+5}, v{L}, 1, 1")
    A(f"v_lshlrev_b32 v{m+3}, 2, v{m+3}"); A(f"v_lshl_add_u32 v{m+3}, v{m+4}, 1, v{m+3}"); A(f"v_add_u32 v{m+3}, v{m+3}, v{m+5}")
    for n in range(8):
        A(f"v_cmp_eq_u32 vcc, {n}, v{m+3}"); A(f"v_cndmask_b32 v{m+8+n}, 0, v{m+2}, vcc")
    for n in range(8): A(f"v_and_b32 v{IR+n}, 0x3f803f80, v{m+8+n}")
    A("s_waitcnt vmcnt(9)")
    if 'pst' in FLAGS: o.extend(stamp(3))
    A(f"s_cmp_ge_u32 s{sWAVE}, 6"); A("s_cbranch_scc1 L_p67")
    A(f"v_lshlrev_b32 v{q+1}, 16, v{q+1}"); A(f"v_mul_f32 v{q+1}, s{sSC}, v{q+1}")
    A(f"v_lshlrev_b32 v{q}, 2, v{vT2}"); A(f"v_add_u32 v{q}, {PAR+PB1}, v{q}"); A(f"ds_write_b32 v{q}, v{q+1}")
    A(f"s_bitcmp1_b32 s{sWAVE}, 0"); A("s_cbranch_scc0 L_kl0")
    for n in range(4): A(f"v_mov_b32 v{m+8+n}, v{m+12+n}")
    A("L_kl0:")
    for n in range(4): A(f"v_and_b32 v{q+8+n}, v{q+8+n}, v{m+8+n}")
    A(f"s_lshl_b32 s68, s{sWAVE}, 10"); A(f"v_add_u32 v{q}, s68, v{vFr}"); A(f"ds_write_b128 v{q}, {vr(q+8,4)}")
    A("s_branch L_pdone")
    A("L_p67:")
    A(f"v_cmp_gt_u32 vcc, 48, v{L}"); A("s_and_saveexec_b64 s[74:75], vcc")
    A(f"s_cmp_eq_u32 s{sWAVE}, 7"); A("s_cbranch_scc1 L_p7")
    A(f"v_lshlrev_b32 v{q+8}, 16, v{q+3}"); A(f"v_and_b32 v{q+9}, 0xffff0000, v{q+3}")
    A(f"v_lshlrev_b32 v{q+10}, 16, v{q+4}"); A(f"v_and_b32 v{q+11}, 0xffff0000, v{q+4}")
    A(f"v_mul_f32 v{q+10}, v{q+8}, v{q+10}"); A(f"v_mul_f32 v{q+11}, v{q+9}, v{q+11}")
    A(f"v_mul_f32 v{q+8}, s{sISC}, v{q+8}"); A(f"v_mul_f32 v{q+9}, s{sISC}, v{q+9}")
    A(f"v_lshrrev_b32 v{q}, 4, v{L}"); A(f"v_lshlrev_b32 v{q}, 7, v{q}")
    A(f"v_bfe_u32 v{q+1}, v{L}, 3, 1"); A(f"v_lshl_add_u32 v{q}, v{q+1}, 6, v{q}")
    A(f"v_bfe_u32 v{q+1}, v{L}, 1, 1"); A(f"v_lshl_add_u32 v{q}, v{q+1}, 5, v{q}")
    A(f"v_bfe_u32 v{q+1}, v{L}, 2, 1"); A(f"v_lshl_add_u32 v{q}, v{q+1}, 4, v{q}")
    A(f"v_and_b32 v{q+1}, 1, v{L}"); A(f"v_lshl_add_u32 v{q}, v{q+1}, 3, v{q}")
    A(f"v_add_u32 v{q}, {PAR}, v{q}")
    A(f"ds_write_b64 v{q}, {vr(q+8,2)} offset:{PG}"); A(f"ds_write_b64 v{q}, {vr(q+10,2)} offset:{PGB}")
    A("s_branch L_p67e")
    A("L_p7:")
    A(f"v_add_u32 v{q}, {PAR+PDW}, v{q+2}"); A(f"ds_write_b32 v{q}, v{q+5}")
    A("L_p67e:")
    A("s_mov_b64 exec, s[74:75]")
    A("L_pdone:")
    if 'b128' in FLAGS: A(f"v_lshlrev_b32 v{vT2}, 4, v{L}")
    A("s_waitcnt vmcnt(3) lgkmcnt(0)")
    if 'pst' in FLAGS: o.extend(stamp(4))
    A("s_barrier")
    return o
STAMP=False
nst=[0]
def stamp(k):
    if not STAMP: return []
    return [I(f"s_memtime s[{76+2*k}:{77+2*k}]"),I("s_memrealtime s[96:97]"),I("s_waitcnt lgkmcnt(0)"),I(f"s_mov_b32 s{77+2*k}, s96")]
CST=[0]
def cstamp(k):
    if not STAMP or 'tst' not in FLAGS: return []
    CST[0]+=1; n=CST[0]
    tc=[int(f[2:]) for f in FLAGS if f.startswith('tc')][0]
    return [I(f"s_cmp_lg_u32 s{sCNT}, {tc}"),I(f"s_cbranch_scc1 L_cst{n}"),I(f"s_memtime s[{76+2*k}:{77+2*k}]"),I("s_memrealtime s[96:97]"),I("s_waitcnt lgkmcnt(0)"),I(f"s_mov_b32 s{77+2*k}, s96"),I(f"L_cst{n}:")]
def stamp_loop(tag):
    if not STAMP or 'pst' in FLAGS or 'tst' in FLAGS: return []
    o=[]
    for c in range(4,0,-1):
        o+=[I(f"s_cmp_lg_u32 s{sCNT}, {c}"),I(f"s_cbranch_scc1 L_st{tag}{c}"),I(f"s_memtime s[{76+2*(7-c)}:{77+2*(7-c)}]"),I("s_memrealtime s[96:97]"),I("s_waitcnt lgkmcnt(0)"),I(f"s_mov_b32 s{77+2*(7-c)}, s96"),I(f"L_st{tag}{c}:")]
    return o
def stamp_end():
    if not STAMP: return []
    o=[I("s_waitcnt vmcnt(0)"),I("s_memtime s[90:91]"),I("s_memrealtime s[92:93]"),I("s_load_dwordx2 s[36:37], s[0:1], 72"),I("s_waitcnt lgkmcnt(0)"),I("s_mov_b32 s91, s92"),
       I("s_lshl_b32 s38, s2, 3"),I(f"s_add_u32 s38, s38, s{sWAVE}"),I("s_lshl_b32 s38, s38, 7"),I("v_mov_b32 v14, s38")]
    for k in range(8):
        o+=[I(f"v_mov_b32 v12, s{76+2*k}"),I(f"v_mov_b32 v13, s{77+2*k}"),I(f"global_store_dwordx2 v14, v[12:13], s[36:37] offset:{8*k}"),I("s_nop 1")]
    o+=[I("v_mov_b32 v12, s92"),I("v_mov_b32 v13, s93"),I("global_store_dwordx2 v14, v[12:13], s[36:37] offset:112"),I("s_nop 1")]
    o+=[I("v_mov_b32 v12, s94"),I("v_mov_b32 v13, s95"),I("global_store_dwordx2 v14, v[12:13], s[36:37] offset:120")]
    return o
def build():
    out=[]
    pro=prologue()
    p,l,v=finalize(pro)
    if STAMP: p=p[:2]+[I("s_memrealtime s[94:95]")]+stamp(0)+p[2:]
    out+=p
    if 'pst' not in FLAGS and ('tst' not in FLAGS or 'tc4' in FLAGS): out+=stamp(1)
    out.append(I(f"s_mov_b32 s{sCNT}, 4"))
    out.append(I(f"s_cmp_ge_u32 s{sWAVE}, 4")); out.append(I("s_cbranch_scc1 L_roleB"))
    for role in (0,1):
        tag="AB"[role]; ROLE[0]=role
        if role==1: out.append(I("L_roleB:"))
        out.append(I(f"s_setprio {PRIO_S[role]}"))
        first=expand_prefetch(boundary(role,False),tag+"0",'cond')
        st=steps(role)
        p,l,v=finalize(first); out+=p
        if 'tst' not in FLAGS: out+=stamp(6 if 'pst' in FLAGS else 2)
        out.append(I("s_nop 7")); out.append(I(f"s_branch L_steps{tag}"))
        out.append(I(".p2align 6"))
        out.append(I(f"L_loop{tag}:"))
        body=cstamp(1)+[I("s_waitcnt vmcnt(0) lgkmcnt(0)")]+cstamp(2)+expand_prefetch(boundary(role,True),tag+"1",'cond')
        stp,l2,v2=finalize(st,l,v)
        bp,l3,v3=finalize(body,[],[],stp[-40:])
        assert len(l3)==len(l) or True
        out+=bp
        out.append(I(f"L_steps{tag}:"))
        stp,_,_=finalize([I("s_waitcnt lgkmcnt(0)")]+st,[],[],bp[-40:])
        out+=stp
        out+=stamp_loop(tag)
        out.append(I(f"s_mov_b32 s{sOFFO}, s{sOFFC}")); out.append(I(f"s_mov_b32 s{sO+2}, 50331648"))
        out.append(I(f"s_sub_u32 s{sCNT}, s{sCNT}, 1"));
        out.append(I(f"s_cmp_lg_u32 s{sCNT}, 0"))
        out.append(I(f"s_cbranch_scc1 L_loop{tag}_pre"))
        fe,_,_=finalize([I("s_waitcnt vmcnt(0) lgkmcnt(0)")]+final_epi(),[],[],stp[-40:])
        out+=fe
        out+=stamp_end()
        out.append(I("s_endpgm"))
        out.append(I(f"L_loop{tag}_pre:"))
        out.append(I(f"s_branch L_loop{tag}"))
    out.append(I("L_end:")); out.append(I("s_endpgm"))
    return out
HDR=open('standalone__modern_conv_block_convnext__vision.s.ref').read().split('\n')
def main(path):
    name="standalone__modern_conv_block_convnext__vision_kernel"
    hdr=[l for l in HDR if l.startswith(';') and not l.startswith('; @launch')]
    hdr=hdr[:hdr.index([l for l in hdr if 'Override launch' in l][0])+2]
    txt="\n".join(hdr)+f"\n; @launch grid=(256,1,1) block=(512,1,1) lds={LDSSZ}\n"
    txt+=f""".amdgcn_target "amdgcn-amd-amdhsa--gfx950"
.text
.globl {name}
.p2align 8
.type {name},@function
{name}:
"""
    for ins in build():
        t=ins.text
        txt+=(t if (ins.kind=='label' or t.startswith('.')) else "    "+t)+"\n"
    txt+=f""".section .rodata,"a"
.p2align 6
.amdhsa_kernel {name}
  .amdhsa_next_free_vgpr 256
  .amdhsa_next_free_sgpr 100
  .amdhsa_accum_offset 256
  .amdhsa_group_segment_fixed_size 0
  .amdhsa_kernarg_size 80
  .amdhsa_user_sgpr_count 2
  .amdhsa_user_sgpr_kernarg_segment_ptr 1
  .amdhsa_system_sgpr_workgroup_id_x 1
.end_amdhsa_kernel
"""
    open(path,'w').write(txt)
if __name__=='__main__':
    for a in sys.argv[2:]:
        for f in a.split(','):
            if f=='stamp': STAMP=True
            else: FLAGS.add(f)
    main(sys.argv[1] if len(sys.argv)>1 else 'standalone__modern_conv_block_convnext__vision.s')
```
